```python
import torch

def _softmax(x, axis=-1):
    return torch.softmax(x, dim=axis)

def _gelu(x):
    return torch.nn.functional.gelu(x, approximate='tanh')

def _silu(x):
    return torch.nn.functional.silu(x)

def _sigmoid(x):
    return torch.sigmoid(x)

def _layernorm(x, axis=-1, eps=1e-05):
    m = x.mean(dim=axis, keepdim=True)
    v = x.var(dim=axis, keepdim=True, unbiased=False)
    return (x - m) / torch.sqrt(v + eps)

def _scatter_add(tgt, idx, src, axis=0):
    return tgt.clone().index_add_(axis, idx, src)

def _segment_sum(src, seg, n):
    out = torch.zeros((n,) + src.shape[1:], dtype=src.dtype)
    return out.index_add_(0, seg, src)

def _pad(x, pw):
    flat = tuple((v for pair in reversed(pw) for v in pair))
    return torch.nn.functional.pad(x, flat)
kernel_name = 'adaLN_cond__sliding_block__mixer_gmlp__prompt'

def setup_inputs():

    _w = lambda a: (lambda t: t.to(torch.bfloat16) if t.is_floating_point() else t)(torch.as_tensor(a))

    def _A_setup():
        B, S, D = (1, 2048, 640)
        return {'x': _w((lambda *s: torch.randn(*s, dtype=torch.bfloat16) * 0.05)(B, S, D)), 'wqkv': _w((lambda *s: torch.randn(*s, dtype=torch.bfloat16) * 0.05)(D, 3 * D)), 'wo': _w((lambda *s: torch.randn(*s, dtype=torch.bfloat16) * 0.05)(D, D))}
    _A_in = _A_setup()

    def _B_setup():
        B, S, D, F = (1, 2048, 640, 1728)
        Fh = F // 2
        return {'x': _w((lambda *s: torch.randn(*s, dtype=torch.bfloat16) * 0.05)(B, S, D)), 'w_in': _w((lambda *s: torch.randn(*s, dtype=torch.bfloat16) * 0.4)(D, 2 * Fh)), 'w_sp': _w(0.01 * (lambda *s: torch.randn(*s, dtype=torch.bfloat16) * 0.4)(S, S)), 'b_sp': _w(1.0 + 0.01 * (lambda *s: torch.randn(*s, dtype=torch.bfloat16) * 0.05)(S)), 'w_out': _w((lambda *s: torch.randn(*s, dtype=torch.bfloat16) * 0.05)(Fh, D))}
    _B_in = _B_setup()
    return {'A_x': _A_in['x'], 'A_wqkv': _A_in['wqkv'], 'A_wo': _A_in['wo'], 'B_x': _B_in['x'], 'B_w_in': _B_in['w_in'], 'B_w_sp': _B_in['w_sp'], 'B_b_sp': _B_in['b_sp'], 'B_w_out': _B_in['w_out'], 'c': _w((lambda *s: torch.randn(*s, dtype=torch.bfloat16) * 0.1)(1, 640) * 8.0), 'w_mod': _w((lambda *s: torch.randn(*s, dtype=torch.bfloat16) * 0.1)(640, 6 * 640) * 640 ** (-0.5) * 8.0)}

def reference(A_x, A_wqkv, A_wo, B_x, B_w_in, B_w_sp, B_b_sp, B_w_out, c, w_mod):

    def _A_ref(x, wqkv, wo):
        B, S, D = x.shape
        H = 32
        Dh = D // H
        W = 256
        qkv = (lambda x, *d: x.permute(*d))((x @ wqkv).reshape(B, S, 3, H, Dh), 2, 0, 3, 1, 4)
        q, k, v = (qkv[0], qkv[1], qkv[2])
        scores = torch.einsum('bhqd,bhkd->bhqk', q, k) * Dh ** (-0.5)
        idx = torch.arange(S)
        mask = (idx[:, None] - idx[None, :] >= 0) & (idx[:, None] - idx[None, :] < W)
        scores = torch.where(mask[None, None], scores, -1000000000.0)
        p = _softmax(scores, axis=-1)
        o = torch.einsum('bhqk,bhkd->bhqd', p, v)
        return (lambda x, *d: x.permute(*d))(o, 0, 2, 1, 3).reshape(B, S, D) @ wo

    def _B_ref(x, w_in, w_sp, b_sp, w_out):
        B, S, D = x.shape
        F = w_in.shape[-1]
        Fh = F // 2
        z = _gelu(torch.einsum('bsd,df->bsf', x, w_in))
        z1 = z[..., :Fh].clone()
        z2 = _layernorm(z[..., Fh:], axis=-1)
        g = torch.einsum('ts,bsf->btf', w_sp, z2) + b_sp[None, :, None]
        return torch.einsum('bsf,fd->bsd', z1 * g, w_out)
    x = A_x
    mod = (_silu(c) @ w_mod).reshape(c.shape[0], 6, 1, -1)
    sa, ca, ga, sb, cb, gb = (mod[:, 0].clone(), mod[:, 1].clone(), mod[:, 2].clone(), mod[:, 3].clone(), mod[:, 4].clone(), mod[:, 5].clone())
    h = _layernorm(x, axis=-1) * (1 + ca) + sa
    x = x + ga * _A_ref(h, A_wqkv, A_wo)
    h = _layernorm(x, axis=-1) * (1 + cb) + sb
    x = x + gb * _B_ref(h, B_w_in, B_w_sp, B_b_sp, B_w_out)
    return x
```

```python
import re


def v(n, c=1):
    return f'v{n}' if c == 1 else f'v[{n}:{n + c - 1}]'


def s(n, c=1):
    return f's{n}' if c == 1 else f's[{n}:{n + c - 1}]'


_REG = re.compile(r'^(-|\|)?(abs\()?([vsa])(\d+|\[(\d+):(\d+)\])\)?\|?$')
TRANS = ('v_exp_f32', 'v_log_f32', 'v_rcp_f32', 'v_rsq_f32', 'v_sqrt_f32', 'v_sin_f32', 'v_cos_f32', 'v_rcp_iflag_f32')


def regs_of(tok):
    tok = tok.strip()
    if tok in ('vcc',):
        return {('s', 'vcc_lo'), ('s', 'vcc_hi')}
    if tok in ('vcc_lo', 'vcc_hi', 'm0', 'exec_lo', 'exec_hi'):
        return {('s', tok)}
    if tok == 'exec':
        return {('s', 'exec_lo'), ('s', 'exec_hi')}
    m = _REG.match(tok)
    if not m:
        return set()
    k = m.group(3)
    if m.group(5) is not None:
        return {(k, i) for i in range(int(m.group(5)), int(m.group(6)) + 1)}
    return {(k, int(m.group(4)))}


class Ins:
    __slots__ = ('text', 'op', 'kind', 'rd', 'wr', 'dpp', 'a', 'b', 'c', 'passes', 'target', 'label', 'ws', 'vm', 'lg', 'data', 'lds')

    def __init__(self, text):
        self.text = text
        self.label = None
        self.target = None
        self.rd = set()
        self.wr = set()
        self.dpp = False
        self.a = self.b = self.c = set()
        self.passes = 0
        self.ws = 1
        self.vm = None
        self.lg = None
        self.data = set()
        self.lds = False
        t = text.split(';')[0].strip()
        if t.endswith(':'):
            self.label = t[:-1]
            self.op = 'label'
            self.kind = 'label'
            self.ws = 0
            return
        if t.startswith('.'):
            self.op = 'dir'
            self.kind = 'dir'
            self.ws = 0
            return
        parts = t.split(None, 1)
        op = parts[0]
        for suf in ('_e32', '_e64', '_dpp', '_sdwa'):
            if op.endswith(suf):
                op = op[:-len(suf)]
        self.op = op
        rest = parts[1] if len(parts) > 1 else ''
        ops = [x.strip() for x in rest.split(',')] if rest else []
        mods = ''
        if ops:
            joined = rest
            m = re.search(r'\s(quad_perm|row_|op_sel|offset|offen|idxen|sc0|sc1|nt|lds|bank_mask|dst_sel|src0_sel|neg_|clamp|bitop3|cbsz|abid|blgp|mul:|div:)', ' ' + joined)
            if m:
                mods = (' ' + joined)[m.start():]
                joined = (' ' + joined)[:m.start()]
            ops = [x.strip() for x in joined.split(',') if x.strip()]
        R = [regs_of(x) for x in ops]
        allr = lambda lst: set().union(*lst) if lst else set()
        if op.startswith('v_mfma'):
            self.kind = 'mfma'
            self.passes = 8 if '32x32' in op else 4
            self.wr = R[0]
            self.a, self.b, self.c = R[1], R[2], R[3]
            self.rd = R[1] | R[2] | R[3]
        elif op.startswith('v_'):
            self.kind = 'trans' if op in TRANS else 'valu'
            self.dpp = ('quad_perm' in mods) or ('row_' in mods and 'row_mask' in mods)
            if op.startswith('v_permlane') and 'swap' in op:
                self.wr = R[0] | R[1]
                self.rd = R[0] | R[1]
            elif op in ('v_add_co_u32', 'v_sub_co_u32', 'v_addc_co_u32', 'v_subb_co_u32'):
                self.wr = R[0] | R[1]
                self.rd = allr(R[2:])
            elif op == 'v_nop':
                pass
            else:
                self.wr = R[0]
                self.rd = allr(R[1:])
                if op in ('v_fmac_f32', 'v_dot2c_f32_bf16', 'v_writelane_b32') or self.dpp:
                    self.rd = self.rd | R[0]
            if op.startswith('v_cmpx'):
                raise ValueError('v_cmpx not modelled')
        elif op.startswith('buffer_') or op.startswith('global_'):
            self.lds = ' lds' in mods or '_lds_' in op
            if op in ('buffer_inv', 'buffer_wbl2'):
                self.kind = 'vmem_other'
            elif 'load' in op:
                self.kind = 'vmem_load'
                if self.lds:
                    self.rd = allr(R) | {('s', 'm0')}
                else:
                    self.wr = R[0]
                    self.rd = allr(R[1:])
                    if 'd16' in op:
                        self.rd = self.rd | R[0]
            elif 'store' in op:
                self.kind = 'vmem_store'
                self.rd = allr(R)
                self.data = R[0] if op.startswith('buffer_') else R[1]
            else:
                raise ValueError('vmem op not modelled: ' + t)
        elif op.startswith('ds_'):
            if op.startswith('ds_read') or op.startswith('ds_bpermute') or op.startswith('ds_swizzle'):
                self.kind = 'ds_read'
                self.wr = R[0]
                self.rd = allr(R[1:])
            elif op.startswith('ds_write'):
                self.kind = 'ds_write'
                self.rd = allr(R)
            else:
                raise ValueError('ds op not modelled: ' + t)
        elif op.startswith('s_'):
            self.kind = 'salu'
            if op == 's_nop':
                self.ws = int(ops[0], 0) + 1
                self.kind = 'nop'
            elif op == 's_waitcnt':
                self.kind = 'wait'
                m = re.search(r'vmcnt\((\d+)\)', t)
                self.vm = int(m.group(1)) if m else None
                m = re.search(r'lgkmcnt\((\d+)\)', t)
                self.lg = int(m.group(1)) if m else None
            elif op == 's_branch' or op.startswith('s_cbranch'):
                self.kind = 'branch'
                self.target = ops[0]
            elif op == 's_endpgm':
                self.kind = 'end'
            elif op in ('s_barrier', 's_sleep', 's_setprio'):
                pass
            elif op.startswith('s_load') or op in ('s_memtime', 's_memrealtime'):
                self.kind = 'smem'
                self.wr = R[0]
                self.rd = allr(R[1:])
            elif op.startswith('s_cmp') or op.startswith('s_bitcmp'):
                self.rd = allr(R)
            else:
                self.wr = R[0]
                self.rd = allr(R[1:])
                if 'saveexec' in op:
                    self.wr = self.wr | regs_of('exec')
                if op in ('s_addk_i32', 's_mulk_i32', 's_cmov_b32'):
                    self.rd = self.rd | R[0]
        else:
            raise ValueError('unknown instruction: ' + t)

    def isvalu(self):
        return self.kind in ('valu', 'trans')


def need(p, c):
    n = 0
    vw = {r for r in p.wr if r[0] in 'va'}
    sw = {r for r in p.wr if r[0] == 's'}
    cvalu = c.isvalu()
    cvmem = c.kind.startswith('vmem')
    cds = c.kind.startswith('ds_')
    if p.isvalu():
        if c.kind == 'mfma' and vw & c.rd:
            n = max(n, 2)
        if cvalu:
            if c.dpp and vw & c.rd:
                n = max(n, 2)
            if c.op.startswith('v_permlane') and vw & c.rd:
                n = max(n, 2)
            if c.op in ('v_readfirstlane_b32', 'v_readlane_b32') and vw & c.rd:
                n = max(n, 1)
            if sw & c.rd:
                n = max(n, 4 if c.op in ('v_readlane_b32', 'v_writelane_b32') else 2)
            if p.kind == 'trans' and c.kind != 'trans' and vw & c.rd:
                n = max(n, 1)
        if p.kind == 'trans' and (c.kind == 'mfma' or cvmem or cds) and vw & c.rd:
            n = max(n, 2)
        if cvmem and sw & c.rd:
            n = max(n, 5)
        if c.kind in ('salu', 'smem', 'branch') and sw & c.rd:
            n = max(n, 2)
    if p.kind == 'mfma':
        big = 12 if p.passes == 8 else 8
        if c.kind == 'mfma':
            if p.wr & (c.a | c.b):
                n = max(n, big)
            if p.wr & c.c:
                if not (p.wr == c.c and p.passes == c.passes):
                    n = max(n, 10 if p.passes == 8 else 6)
            elif p.wr & c.wr:
                n = max(n, 10 if p.passes == 8 else 6)
        elif cvalu or cvmem or cds:
            if p.wr & (c.rd | c.wr):
                n = max(n, big)
        if cvalu and p.c & c.wr:
            n = max(n, 7 if p.passes == 8 else 3)
    if p.kind == 'vmem_store' and len(p.data) >= 3:
        if p.data & c.wr:
            n = max(n, 2 if cvalu else 1)
    if p.kind == 'salu' and ('s', 'm0') in p.wr and cvmem and c.lds:
        n = max(n, 1)
    return n


class Prog:
    def __init__(self):
        self.ins = []

    def __call__(self, text):
        for line in text.split('\n'):
            t = line.strip()
            if t and not t.startswith(';'):
                self.ins.append(Ins(t))

    def _cfg(self):
        lab = {x.label: i for i, x in enumerate(self.ins) if x.label}
        n = len(self.ins)
        succ = [[] for _ in range(n)]
        for i, x in enumerate(self.ins):
            if x.kind == 'end':
                continue
            if x.kind == 'branch':
                succ[i].append(lab[x.target])
                if x.op != 's_branch' and i + 1 < n:
                    succ[i].append(i + 1)
            elif i + 1 < n:
                succ[i].append(i + 1)
        pred = [[] for _ in range(n)]
        for i, ss in enumerate(succ):
            for j in ss:
                pred[j].append(i)
        return succ, pred

    def fix_hazards(self, verbose=False):
        total = 0
        while True:
            succ, pred = self._cfg()
            ins_at = {}
            for ci, c in enumerate(self.ins):
                if c.kind in ('label', 'dir', 'nop', 'wait', 'end'):
                    continue
                short = 0
                stack = [(p, 0) for p in pred[ci]]
                seen = {}
                while stack:
                    pi, d = stack.pop()
                    if seen.get(pi, 99) <= d:
                        continue
                    seen[pi] = d
                    p = self.ins[pi]
                    nd = need(p, c)
                    if nd > d:
                        short = max(short, nd - d)
                    d2 = d + p.ws
                    if d2 < 12:
                        stack.extend((q, d2) for q in pred[pi])
                if short:
                    ins_at[ci] = short
                    break
            if not ins_at:
                break
            ci, k = next(iter(ins_at.items()))
            if verbose:
                print(f'hazard: +{k} before #{ci} {self.ins[ci].text}')
            self.ins.insert(ci, Ins(f's_nop {k - 1}'))
            total += k
        return total

    def fix_hazards_fast(self, verbose=False):
        total = 0
        changed = True
        while changed:
            changed = False
            succ, pred = self._cfg()
            out = []
            add = {}
            for ci, c in enumerate(self.ins):
                if c.kind in ('label', 'dir', 'nop', 'wait', 'end'):
                    continue
                short = 0
                stack = [(p, add.get(ci, 0)) for p in pred[ci]]
                seen = {}
                while stack:
                    pi, d = stack.pop()
                    if seen.get(pi, 99) <= d:
                        continue
                    seen[pi] = d
                    p = self.ins[pi]
                    nd = need(p, c)
                    if nd > d:
                        short = max(short, nd - d)
                    d2 = d + p.ws + add.get(pi, 0)
                    if d2 < 12:
                        stack.extend((q, d2) for q in pred[pi])
                if short:
                    add[ci] = short
                    if verbose:
                        print(f'hazard: +{short} before {c.text}')
            if add:
                changed = True
                for ci, c in enumerate(self.ins):
                    if ci in add:
                        out.append(Ins(f's_nop {add[ci] - 1}'))
                        total += add[ci]
                    out.append(c)
                self.ins = out
        return total

    def check_waits(self, assume=None):
        succ, pred = self._cfg()
        errs = {}
        seen = {}
        assume = assume or {}
        keep_scc = ('s_mov_b32', 's_mov_b64', 's_cmov_b32', 's_cselect_b32', 's_cselect_b64', 's_mul_i32', 's_barrier', 's_movk_i32', 's_sleep', 's_setprio', 's_getpc_b64')
        cmps = {'eq': lambda a, b: a == b, 'lg': lambda a, b: a != b, 'lt': lambda a, b: a < b, 'le': lambda a, b: a <= b, 'gt': lambda a, b: a > b, 'ge': lambda a, b: a >= b}
        stack = [(0, (), (), None)]
        steps = 0
        while stack:
            pc, vm, lg, scc = stack.pop()
            while True:
                steps += 1
                if steps > 5_000_000:
                    raise RuntimeError('check_waits: too many states')
                x = self.ins[pc]
                if x.kind == 'label' or x.kind == 'branch':
                    key = (vm, lg, scc)
                    st = seen.setdefault(pc, set())
                    if key in st:
                        break
                    if len(st) > 40:
                        break
                    st.add(key)
                if x.kind == 'wait':
                    if x.vm is not None and len(vm) > x.vm:
                        vm = vm[len(vm) - x.vm:] if x.vm else ()
                    if x.lg is not None:
                        if x.lg == 0:
                            lg = ()
                        elif len(lg) > x.lg:
                            if any(e[0] == 'smem' for e in lg):
                                pass
                            else:
                                lg = lg[len(lg) - x.lg:]
                else:
                    touch = x.rd | x.wr
                    for q, nm in ((vm, 'vm'), (lg, 'lgkm')):
                        for e in q:
                            pend = e[1]
                            hit = pend & touch
                            if hit and not (hit & x.rd) and ((nm == 'vm' and x.kind == 'vmem_load') or (nm == 'lgkm' and x.kind == 'ds_read' and e[0] != 'smem')):
                                hit = None
                            if hit:
                                errs.setdefault(pc, f'#{pc} {x.text}: {sorted(hit, key=str)[:4]} pending in {nm}')
                    if x.kind in ('vmem_load', 'vmem_store', 'vmem_other'):
                        vm = vm + ((x.kind, frozenset(x.wr)),)
                        if len(vm) > 63:
                            errs.setdefault(pc, f'#{pc} {x.text}: more than 63 vm ops outstanding')
                            vm = vm[-63:]
                    elif x.kind in ('ds_read', 'ds_write'):
                        lg = lg + ((x.kind, frozenset(x.wr)),)
                        if len(lg) > 15:
                            lg = lg[-24:]
                    elif x.kind == 'smem':
                        lg = lg + (('smem', frozenset(x.wr)),)
                if x.kind == 'salu':
                    m = re.match(r's_cmp_(\w\w)_[ui]32\s+s(\d+),\s*(\d+)\s*$', x.text.split(';')[0].strip())
                    if m and int(m.group(2)) in assume:
                        scc = cmps[m.group(1)](assume[int(m.group(2))], int(m.group(3)))
                    elif x.op not in keep_scc:
                        scc = None
                ss = succ[pc]
                if not ss:
                    break
                if x.kind == 'branch' and x.op in ('s_cbranch_scc0', 's_cbranch_scc1') and scc is not None:
                    taken = scc if x.op.endswith('1') else not scc
                    ss = [ss[0]] if taken else [ss[1]]
                for q in ss[1:]:
                    stack.append((q, vm, lg, scc))
                pc = ss[0]
        return list(errs.values())

    def text(self):
        out = []
        for x in self.ins:
            out.append(x.text if x.kind in ('label',) else '  ' + x.text)
        return '\n'.join(out) + '\n'

    def max_regs(self):
        mv = ms = -1
        for x in self.ins:
            for k, n in (x.rd | x.wr):
                if k == 'v':
                    mv = max(mv, n)
                elif k == 's' and isinstance(n, int):
                    ms = max(ms, n)
        return mv, ms
```

```python
import sys
import struct
sys.path.insert(0, 'scratch')
from asmfw import Prog, v, s

NAME = 'adaLN_cond__sliding_block__mixer_gmlp__prompt'


def f32(x):
    return '0x%08x' % struct.unpack('<I', struct.pack('<f', x))[0]


EPOCH = 0
FL = 4096
F0A = FL + 0
F0M = FL + 1024
FP2 = FL + 2048
FM2 = FL + 3072
F1 = FL + 4096
F4 = FL + 5120
F2 = FL + 8192
F3 = FL + 12288
F4A = FL + 16384
F5 = FL + 20480
MODP1 = 32768
MODP2 = 65536
ST = 98304
WQ = 0x100000
WO = 0x380000
WI = 0x480000
WU = 0x6C0000
KV = 0x800000
OO = 0xD80000
X1 = 0x1000000
Z2 = 0x1280000
YY = 0x1600000
DBG = 0x1A00000
WS_USED = 0x2000000

L_H = 0
L_PREP1 = 0
L_C1 = 81920
L_SILU = 87040
L_OWN = 90112
L_QI = 112640
L_PREP2 = 122880
L_OST = 122880
L_OI = 0
L_RED = 81920
L_X1S = 143360
L_C2 = 153600
L_STP = 81920
L_STF = 86016
L_TR = 0
L_SPB = 98304
L_SPA = 32768
L_YI = 0
L_RED2 = 0
L_OUTS = 61440
LDS_BYTES = 163840

pX, pWQKV, pWO, pBX, pWIN, pWSP, pBSP, pWOUT, pC, pWMOD, pOUT, pDBG, pWS = 4, 6, 8, 10, 12, 14, 16, 18, 20, 22, 24, 26, 28
RWS, RA, RB = 32, 36, 40
sI, sJ, sW, sN, sRHO, sE = 44, 45, 46, 47, 48, 49
T = list(range(50, 64))
sMASK = 64
sKQ, sNH, sTS = 96, 97, 98

vTID, vL, vL16 = 0, 1, 2
vX1K = 240
vZ1K = 246

POLL_MAX = 40000
SCALE_Q = (20 ** -0.5) * 1.4426950408889634


class Gen:
    def __init__(self, stop=None, stamps=False, only=None):
        self.only = only
        self.p = Prog()
        self.stop = stop
        self.stamps = stamps
        self.nlab = 0
        self.nstamp = 0

    def lab(self, base):
        self.nlab += 1
        return f'L_{base}_{self.nlab}'

    def srd(self, r, ptr, nbytes):
        self.p(f'''s_mov_b32 {s(r)}, {s(ptr)}
                   s_mov_b32 {s(r+1)}, {s(ptr+1)}
                   s_mov_b32 {s(r+2)}, {nbytes}
                   s_mov_b32 {s(r+3)}, 0x20000''')

    def stamp(self, name='', pre=None, real=False):
        if not self.stamps:
            return
        if self.only and name not in self.only and not name.startswith('@'):
            return
        names = getattr(self, 'stampnames', [])
        if name in names:
            k = names.index(name)
        else:
            k = self.nstamp
            self.nstamp += 1
            self.stampnames = names + [name]
        p = self.p
        L = self.lab('st')
        p(f'''s_and_b32 {s(T[12])}, {s(sW)}, 7
              s_cmp_eq_u32 {s(T[12])}, 0
              s_cselect_b32 {s(T[13])}, 1, 0
              s_cmp_eq_u32 {s(T[12])}, 7
              s_cselect_b32 {s(T[13])}, 1, {s(T[13])}
              s_cmp_eq_u32 {s(T[13])}, 0
              s_cbranch_scc1 {L}
              {'' if pre else ('s_memrealtime' if real else 's_memtime') + f' {s(sTS, 2)}'}
              s_waitcnt lgkmcnt(0)
              v_mov_b32 v3, {s(pre if pre else sTS)}
              s_lshl_b32 {s(T[13])}, s2, 9
              s_lshr_b32 {s(T[12])}, {s(sW)}, 2
              s_lshl_b32 {s(T[12])}, {s(T[12])}, 8
              s_add_u32 {s(T[13])}, {s(T[13])}, {s(T[12])}
              s_add_u32 {s(T[13])}, {s(T[13])}, {DBG + 4 * k}
              s_mov_b64 exec, 1
              buffer_store_dword v3, off, {s(RWS, 4)}, {s(T[13])}
              s_mov_b64 exec, -1
              {L}:''')

    def flag_store(self, soff):
        self.p(f'''v_mov_b32 v3, {s(sN)}
                   s_mov_b64 exec, 1
                   buffer_store_dword v3, off, {s(RWS, 4)}, {s(soff)} sc1
                   s_mov_b64 exec, -1''')

    def poll(self, addrs, tmp, first_issued=False):
        p = self.p
        Lp, Ld, Lc = self.lab('poll'), self.lab('pdone'), self.lab('pchk')
        cnt = T[11]
        p(f's_mov_b32 {s(cnt)}, 0')
        if first_issued:
            p(f's_branch {Lc}')
        p(f'{Lp}:')
        for a, t in zip(addrs, tmp):
            p(f'buffer_load_dword {v(t)}, {v(a)}, {s(RWS, 4)}, 0 offen sc1')
        p(f'{Lc}:')
        p('s_waitcnt vmcnt(0)')
        p(f'v_cmp_ne_u32 vcc, {s(sN)}, {v(tmp[0])}')
        for t in tmp[1:]:
            p(f'''v_cmp_ne_u32 {s(T[8], 2)}, {s(sN)}, {v(t)}
                  s_or_b64 vcc, vcc, {s(T[8], 2)}''')
        p(f'''s_cmp_eq_u64 vcc, 0
              s_cbranch_scc1 {Ld}
              s_add_u32 {s(cnt)}, {s(cnt)}, 1
              s_cmp_lt_u32 {s(cnt)}, {POLL_MAX}
              s_cbranch_scc1 {Lp}
              {Ld}:''')

    def if_wave(self, cmp, val):
        L = self.lab('w')
        self.p(f'''s_cmp_{cmp}_u32 {s(sW)}, {val}
                   s_cbranch_scc0 {L}''')
        return L

    def divrow(self, vrow, vp, vidx, P):
        M = 65536 // P + 1
        for i in range(64 * ((32 * P) // 64)):
            assert (i * M) >> 16 == i // P
        self.p(f'''v_mul_u32_u24 {v(vrow)}, {M}, {v(vidx)}
                   v_lshrrev_b32 {v(vrow)}, 16, {v(vrow)}
                   v_mul_u32_u24 {v(vp)}, {P}, {v(vrow)}
                   v_sub_u32 {v(vp)}, {v(vidx)}, {v(vp)}''')

    def subtile_off(self, vdst, vidx, P, stride, t0, t1):
        self.divrow(t0, t1, vidx, P)
        self.p(f'''v_mul_u32_u24 {v(t0)}, {stride}, {v(t0)}
                   v_lshl_add_u32 {v(vdst)}, {v(t1)}, 4, {v(t0)}''')

    def dma(self, vaddr, srd, soff, lds, imm=0, sc1=False):
        if isinstance(lds, tuple):
            self.p(f's_mov_b32 m0, {s(lds[0])}')
        elif lds is not None:
            self.p(f's_mov_b32 m0, {lds}')
        so = s(soff) if soff is not None else '0'
        self.p(f'buffer_load_dwordx4 {v(vaddr)}, {s(srd, 4)}, {so} offen' + (f' offset:{imm}' if imm else '') + (' sc1' if sc1 else '') + ' lds')

    def ln_unpack(self, raw, xn):
        p = self.p
        for k in range(40):
            p(f'v_lshlrev_b32 {v(xn + 2*k)}, 16, {v(raw + k)}')
            p(f'v_and_b32 {v(xn + 2*k + 1)}, 0xffff0000, {v(raw + k)}')

    def ln_stats(self, xn, t):
        p = self.p
        s1 = [t + a for a in range(4)]
        s2 = [t + 4 + a for a in range(4)]
        for e in range(20):
            for a in range(4):
                x = xn + 20 * a + e
                if e == 0:
                    p(f'v_mul_f32 {v(s2[a])}, {v(x)}, {v(x)}')
                elif e == 1:
                    p(f'v_add_f32 {v(s1[a])}, {v(x-1)}, {v(x)}')
                    p(f'v_fmac_f32 {v(s2[a])}, {v(x)}, {v(x)}')
                else:
                    p(f'v_add_f32 {v(s1[a])}, {v(s1[a])}, {v(x)}')
                    p(f'v_fmac_f32 {v(s2[a])}, {v(x)}, {v(x)}')
        for a in range(4):
            p(f'v_permlane16_swap_b32 {v(s1[a])}, {v(s2[a])}')
        for a in range(4):
            p(f'v_add_f32 {v(s1[a])}, {v(s1[a])}, {v(s2[a])}')
        for m in ('quad_perm:[1,0,3,2]', 'quad_perm:[2,3,0,1]', 'row_half_mirror', 'row_mirror'):
            for a in range(4):
                p(f'v_add_f32_dpp {v(s1[a])}, {v(s1[a])}, {v(s1[a])} {m} row_mask:0xf bank_mask:0xf')
        for a in range(4):
            p(f'v_mov_b32 {v(s2[a])}, {v(s1[a])}')
        for a in range(4):
            p(f'v_permlane16_swap_b32 {v(s1[a])}, {v(s2[a])}')
        inv = f32(1.0 / 640)
        for a in range(4):
            p(f'v_mul_f32 {v(s1[a])}, {inv}, {v(s1[a])}')
        for a in range(4):
            p(f'v_mul_f32 {v(s2[a])}, {inv}, {v(s2[a])}')
        for a in range(4):
            p(f'v_fma_f32 {v(s2[a])}, -{v(s1[a])}, {v(s1[a])}, {v(s2[a])}')
        for a in range(4):
            p(f'v_max_f32 {v(s2[a])}, 0, {v(s2[a])}')
        for a in range(4):
            p(f'v_add_f32 {v(s2[a])}, {f32(1e-5)}, {v(s2[a])}')
        for a in range(4):
            p(f'v_rsq_f32 {v(s2[a])}, {v(s2[a])}')
        for a in range(4):
            p(f'v_mul_f32 {v(s1[a])}, {v(s1[a])}, {v(s2[a])}')
        for e in range(20):
            for a in range(4):
                x = xn + 20 * a + e
                p(f'v_fma_f32 {v(x)}, {v(x)}, {v(s2[a])}, -{v(s1[a])}')

    def ln_haddr(self, ha, t):
        p = self.p
        p(f'''v_and_b32 {v(t)}, 31, {v(vTID)}
              v_lshrrev_b32 {v(t+1)}, 1, {v(t)}
              v_and_b32 {v(t+2)}, 1, {v(t)}
              v_lshlrev_b32 {v(t+2)}, 3, {v(t+2)}
              v_lshl_add_u32 {v(t+2)}, {v(t+1)}, 10, {v(t+2)}
              v_and_b32 {v(t+1)}, 7, {v(t+1)}
              v_lshrrev_b32 {v(t)}, 5, {v(vTID)}
              v_lshlrev_b32 {v(t)}, 2, {v(t)}''')
        for a in range(4):
            p(f'''v_add_u32 {v(t+3)}, {a}, {v(t)}
                  v_xor_b32 {v(t+3)}, {v(t+3)}, {v(t+1)}
                  v_lshl_add_u32 {v(ha+a)}, {v(t+3)}, 4, {v(t+2)}''')

    def ln_cread(self, cst, vaddr, base):
        for m in range(5):
            self.p(f'ds_read_b128 {v(cst + 8*m, 4)}, {v(vaddr)} offset:{base + m*512}')
            self.p(f'ds_read_b128 {v(cst + 8*m + 4, 4)}, {v(vaddr)} offset:{base + 2560 + m*512}')

    def ln_apply(self, xn, cst, ha, t):
        p = self.p
        for m in range(5):
            p(f's_waitcnt lgkmcnt({min(15, 2*(4-m) + 4*m)})' if m else 's_waitcnt lgkmcnt(8)')
            if m == 4:
                for a in range(4):
                    p(f'v_add_u32 {v(ha+a)}, 0x10000, {v(ha+a)}')
            for a in range(4):
                x = xn + 20 * a + 4 * m
                for e in range(4):
                    p(f'v_fma_f32 {v(x+e)}, {v(x+e)}, {v(cst + 8*m + e)}, {v(cst + 8*m + 4 + e)}')
            for a in range(4):
                x = xn + 20 * a + 4 * m
                p(f'v_cvt_pk_bf16_f32 {v(t + 2*a)}, {v(x)}, {v(x+1)}')
                p(f'v_cvt_pk_bf16_f32 {v(t + 2*a + 1)}, {v(x+2)}, {v(x+3)}')
                p(f'ds_write_b64 {v(ha+a)}, {v(t + 2*a, 2)} offset:{(m % 4) * 16384}')

    def a_addr_swz(self, dst, t):
        p = self.p
        p(f'''v_and_b32 {v(t)}, 15, {v(vL)}
              v_lshrrev_b32 {v(t+1)}, 4, {v(vL)}''')
        for e in range(2):
            p(f'''v_add_u32 {v(t+2)}, {4*e}, {v(t+1)}
                  v_xor_b32 {v(t+3)}, {v(t)}, {v(t+2)}
                  v_lshlrev_b32 {v(t+3)}, 4, {v(t+3)}
                  v_lshl_add_u32 {v(dst+e)}, {v(t+2)}, 10, {v(t+3)}
                  v_add_u32 {v(dst+2+e)}, 0x10000, {v(dst+e)}''')

    def a_read_swz(self, buf, ab, ks):
        for mb in range(4):
            off = (ks >> 1) * 8192 + mb * 256
            r = ab + (ks & 1)
            if off >= 65536:
                off -= 65536
                r += 2
            self.p(f'ds_read_b128 {v(buf + 4*mb, 4)}, {v(r)} offset:{L_H + off}')

    def mod_consts(self, srcbase, nparts, pstride, ld, t, ldsbase):
        p = self.p
        for k in range(1, nparts):
            for e in range(4):
                p(f'v_add_f32 {v(ld+e)}, {v(ld+e)}, {v(ld + 4*k + e)}')
        p(f'''s_movk_i32 {s(T[10])}, 160
              v_cmp_le_u32 {s(T[8], 2)}, {s(T[10])}, {v(vTID)}
              v_mov_b32 {v(t)}, 0
              v_mov_b32 {v(t+1)}, 1.0
              v_cndmask_b32 {v(t)}, {v(t)}, {v(t+1)}, {s(T[8], 2)}
              v_lshlrev_b32 {v(t+1)}, 4, {v(vTID)}
              v_add_u32 {v(t+2)}, {ldsbase + 2560}, {v(t+1)}
              v_add_u32 {v(t+1)}, {ldsbase - 2560}, {v(t+1)}
              v_cndmask_b32 {v(t+1)}, {v(t+2)}, {v(t+1)}, {s(T[8], 2)}''')
        for rnd in range(2):
            p(f'''v_cvt_pk_bf16_f32 {v(t+2)}, {v(ld)}, {v(ld+1)}
                  v_cvt_pk_bf16_f32 {v(t+3)}, {v(ld+2)}, {v(ld+3)}
                  v_lshlrev_b32 {v(ld)}, 16, {v(t+2)}
                  v_and_b32 {v(ld+1)}, 0xffff0000, {v(t+2)}
                  v_lshlrev_b32 {v(ld+2)}, 16, {v(t+3)}
                  v_and_b32 {v(ld+3)}, 0xffff0000, {v(t+3)}''')
            if rnd == 0:
                for e in range(4):
                    p(f'v_add_f32 {v(ld+e)}, {v(ld+e)}, {v(t)}')
        p(f'ds_write_b128 {v(t+1)}, {v(ld, 4)}')

    def tr_addr(self, dst, stride, t):
        self.p(f'''v_lshrrev_b32 {v(t)}, 4, {v(vL)}
                   v_bfe_u32 {v(t+1)}, {v(vL)}, 2, 2
                   v_lshl_add_u32 {v(t)}, {v(t)}, 3, {v(t+1)}
                   v_mul_u32_u24 {v(t)}, {stride}, {v(t)}
                   v_and_b32 {v(t+1)}, 3, {v(vL)}
                   v_lshl_add_u32 {v(dst)}, {v(t+1)}, 3, {v(t)}''')

    def tr_frag(self, dst, vaddr, off, stride):
        self.p(f'''ds_read_b64_tr_b16 {v(dst, 2)}, {v(vaddr)} offset:{off}
                   ds_read_b64_tr_b16 {v(dst+2, 2)}, {v(vaddr)} offset:{off + 4*stride}''')

    def mod_job(self, ldsbase, nks, skoff, sdst, wave0):
        p = self.p
        t = 8
        self.tr_addr(t, 128, t + 1)
        p(f'''s_sub_u32 {s(T[0])}, {s(sW)}, {wave0}
              s_lshl_b32 {s(T[1])}, {s(T[0])}, 5
              v_add_u32 {v(t)}, {s(T[1])}, {v(t)}
              v_add_u32 {v(t)}, {ldsbase}, {v(t)}
              v_lshrrev_b32 {v(t+1)}, 4, {v(vL)}
              v_lshlrev_b32 {v(t+2)}, 4, {v(t+1)}
              v_add_u32 {v(t+2)}, {s(skoff)}, {v(t+2)}
              v_add_u32 {v(t+2)}, {L_SILU}, {v(t+2)}''')
        acc = 12
        fr = 16
        for ks in range(nks):
            b = fr + 8 * (ks % 5)
            self.tr_frag(b, t, ks * 4096, 128)
            p(f'ds_read_b128 {v(b+4, 4)}, {v(t+2)} offset:{ks*64}')
            if ks % 5 == 4:
                for k2 in range(ks - 4, ks + 1):
                    b2 = fr + 8 * (k2 % 5)
                    p(f's_waitcnt lgkmcnt({3*(ks-k2)})')
                    p(f'v_mfma_f32_16x16x32_bf16 {v(acc, 4)}, {v(b2, 4)}, {v(b2+4, 4)}, {v(acc, 4) if k2 else 0}')
        p(f'''s_lshl_b32 {s(T[1])}, {s(T[0])}, 6
              s_add_u32 {s(sdst)}, {s(sdst)}, {s(T[1])}
              v_and_b32 {v(t+3)}, 15, {v(vL)}
              v_cmp_eq_u32 {s(T[8], 2)}, 0, {v(t+3)}
              v_lshlrev_b32 {v(t+1)}, 4, {v(t+1)}
              v_mov_b32 {v(t+3)}, 0x40000000
              v_cndmask_b32 {v(t+1)}, {v(t+3)}, {v(t+1)}, {s(T[8], 2)}
              buffer_store_dwordx4 {v(acc, 4)}, {v(t+1)}, {s(RWS, 4)}, {s(sdst)} offen sc1''')

    def prologue(self):
        p = self.p
        p(f'''s_cmp_ge_u32 s2, 256
              s_cbranch_scc1 L_end
              {f's_memrealtime {s(sTS, 2)}' if self.stamps else ''}
              {f's_memtime {s(sTS + 2, 2)}' if self.stamps else ''}
              s_load_dwordx16 s[4:19], s[0:1], 0
              s_load_dwordx4 s[20:23], s[0:1], 64
              s_load_dwordx4 s[24:27], s[0:1], 80
              s_load_dwordx2 s[28:29], s[0:1], 96
              v_lshrrev_b32 v3, 6, v0
              v_and_b32 {v(vL)}, 63, v0
              v_readfirstlane_b32 {s(sW)}, v3
              v_lshlrev_b32 {v(vL16)}, 4, {v(vL)}
              s_and_b32 {s(T[0])}, s2, 7
              s_lshr_b32 {s(T[1])}, s2, 3
              s_and_b32 {s(sJ)}, {s(T[1])}, 7
              s_lshr_b32 {s(T[1])}, {s(T[1])}, 3
              s_lshl_b32 {s(sI)}, {s(T[0])}, 2
              s_add_u32 {s(sI)}, {s(sI)}, {s(T[1])}
              s_lshl_b32 {s(sRHO)}, {s(T[1])}, 3
              s_add_u32 {s(sRHO)}, {s(sRHO)}, {s(T[0])}
              s_and_b32 {s(sKQ)}, {s(sW)}, 3
              s_lshr_b32 {s(sNH)}, {s(sW)}, 2''')
        p(f'''s_getpc_b64 {s(T[2], 2)}
              v_lshlrev_b32 v4, 7, v0
              v_min_u32 v4, CODE_BYTES, v4
              global_load_dword v5, v4, {s(T[2], 2)}
              s_waitcnt lgkmcnt(0)''')
        self.srd(RWS, pWS, WS_USED)
        p(f'buffer_load_dword v6, off, {s(RWS, 4)}, 0 sc1')
        self.stamp('@r0', pre=sTS)
        self.stamp('@c0', pre=sTS + 2)
        self.stamp('entry')
        Lmod, Lnone, Lx = self.lab('rmod'), self.lab('rnone'), self.lab('rx')
        p(f'''s_cmp_ge_u32 {s(sRHO)}, 22
              s_cbranch_scc1 {Lmod}
              s_cmp_ge_u32 {s(sRHO)}, 20
              s_cbranch_scc1 {Lx}''')
        self.srd(RA, pWQKV, 640 * 3840)
        p(f'''s_mul_i32 {s(T[0])}, {s(sRHO)}, {32*3840}
              s_mul_i32 {s(T[1])}, {s(sJ)}, 160
              s_add_u32 {s(T[0])}, {s(T[0])}, {s(T[1])}''')
        for a in range(2):
            Ls = self.lab('pk')
            p(f's_add_u32 {s(T[2])}, {s(sW)}, {8*a}')
            if a:
                p(f'''s_cmp_ge_u32 {s(T[2])}, 15
                      s_cbranch_scc1 {Ls}''')
            p(f'''s_mul_i32 {s(T[3])}, {s(T[2])}, 52
                  s_lshr_b32 {s(T[3])}, {s(T[3])}, 8
                  s_mul_i32 {s(T[4])}, {s(T[3])}, 5
                  s_sub_u32 {s(T[4])}, {s(T[2])}, {s(T[4])}
                  s_lshl_b32 {s(T[4])}, {s(T[4])}, 6
                  v_add_u32 v8, {s(T[4])}, {v(vL)}
                  s_add_u32 {s(T[3])}, {s(T[3])}, 1
                  s_cmp_eq_u32 {s(T[3])}, 3
                  s_cselect_b32 {s(T[3])}, 0, {s(T[3])}
                  s_mul_i32 {s(T[3])}, {s(T[3])}, 1280
                  s_add_u32 {s(T[3])}, {s(T[3])}, {s(T[0])}
                  s_lshl_b32 {s(T[5])}, {s(T[2])}, 10''')
            self.subtile_off(9, 8, 10, 3840, 10, 11)
            self.dma(9, RA, T[3], (T[5],))
            p(f'{Ls}:')
        p(f's_branch {Lx}')
        p(f'{Lmod}:')
        self.srd(RA, pWMOD, 640 * 7680)
        self.srd(RB, pC, 1280)
        p(f'''v_lshlrev_b32 v8, 2, v0
              buffer_load_dword v12, v8, {s(RB, 4)}, 0 offen
              s_sub_u32 {s(T[0])}, {s(sRHO)}, 22
              s_lshl_b32 {s(T[0])}, {s(T[0])}, 3
              s_add_u32 {s(T[0])}, {s(T[0])}, {s(sJ)}
              s_mul_i32 {s(T[1])}, {s(T[0])}, 205
              s_lshr_b32 {s(T[1])}, {s(T[1])}, 12
              s_mul_i32 {s(T[2])}, {s(T[1])}, 20
              s_sub_u32 {s(T[2])}, {s(T[0])}, {s(T[2])}
              s_mul_i32 {s(T[3])}, {s(T[1])}, {160*7680}
              s_lshl_b32 {s(T[4])}, {s(T[2])}, 7
              s_add_u32 {s(T[3])}, {s(T[3])}, {s(T[4])}
              s_mul_i32 {s(T[4])}, {s(sW)}, {8*7680}
              s_add_u32 {s(T[3])}, {s(T[3])}, {s(T[4])}
              s_lshl_b32 {s(T[5])}, {s(sW)}, 10
              v_lshrrev_b32 v9, 3, {v(vL)}
              v_mul_u32_u24 v9, 7680, v9
              v_and_b32 v10, 7, {v(vL)}
              v_lshl_add_u32 v9, v10, 4, v9''')
        for mj in range(80):
            assert (mj * 205) >> 12 == mj // 20
        for a in range(3):
            Ls = self.lab('md')
            if a == 2:
                p(f'''s_cmp_ge_u32 {s(sW)}, 4
                      s_cbranch_scc1 {Ls}''')
            self.dma(9, RA, T[3], (T[5],))
            p(f'''s_add_u32 {s(T[3])}, {s(T[3])}, {64*7680}
                  s_add_u32 {s(T[5])}, {s(T[5])}, 8192
                  {Ls}:''')
        p(f'{Lx}:')
        self.srd(RB + 0, pX, 2048 * 1280) if False else None
        RX = RB
        self.srd(RX, pX, 2048 * 1280)
        p(f'''v_lshrrev_b32 v8, 5, v0
              v_mul_u32_u24 v8, 5120, v8
              v_and_b32 v9, 31, v0
              v_lshl_add_u32 v8, v9, 3, v8
              v_add_u32 v9, 2560, v8
              s_mul_i32 {s(T[6])}, {s(sI)}, 81920''')
        raw = 96
        for a in range(4):
            for m in range(5):
                p(f'buffer_load_dwordx2 {v(raw + 10*a + 2*m, 2)}, {v(8 + (a >> 1))}, {s(RX, 4)}, {s(T[6])} offen offset:{(a & 1)*1280 + m*256}')
        Lw = self.if_wave('lt', 4)
        p(f'''v_lshrrev_b32 v8, 7, v0
              v_mul_u32_u24 v8, 11264, v8
              v_bfe_u32 v9, v0, 5, 2
              v_mul_u32_u24 v9, 2816, v9
              v_and_b32 v10, 31, v0
              v_mul_u32_u24 v10, 48, v10
              v_add3_u32 v8, v8, v9, v10
              v_add_u32 v8, {L_OWN + 1280 + 40}, v8
              v_mov_b32 v10, 0x3f80
              v_mov_b32 v11, 0
              ds_write_b64 v8, v[10:11]
              {Lw}:''')
        p(f'''s_waitcnt vmcnt(20)
              v_readfirstlane_b32 {s(sE)}, v6
              s_mul_i32 {s(sN)}, {s(sE)}, 0x9E3779B1
              s_add_u32 {s(sN)}, {s(sN)}, 0x7F4A7C15''')
        self.stamp('r1land')
        Lm2, Lr1 = self.lab('rm'), self.lab('r1done')
        p(f'''s_cmp_ge_u32 {s(sRHO)}, 22
              s_cbranch_scc1 {Lm2}
              s_cmp_ge_u32 {s(sRHO)}, 20
              s_cbranch_scc1 {Lr1}
              s_barrier''')
        Lw = self.if_wave('lt', 5)
        self.tr_addr(8, 160, 9)
        p(f'''s_lshl_b32 {s(T[0])}, {s(sW)}, 5
              v_add_u32 v8, {s(T[0])}, v8
              s_mul_i32 {s(T[1])}, {s(sJ)}, {20*15360}
              s_mul_i32 {s(T[2])}, {s(sRHO)}, 15360
              s_add_u32 {s(T[1])}, {s(T[1])}, {s(T[2])}
              s_lshl_b32 {s(T[2])}, {s(sW)}, 10
              s_add_u32 {s(T[1])}, {s(T[1])}, {s(T[2])}
              s_add_u32 {s(T[1])}, {s(T[1])}, {WQ}''')
        for sec in range(3):
            self.tr_frag(12 + 4*sec, 8, L_PREP1 + sec*5120, 160)
        for sec in range(3):
            p(f's_waitcnt lgkmcnt({2*(2-sec)})')
            p(f'buffer_store_dwordx4 {v(12 + 4*sec, 4)}, {v(vL16)}, {s(RWS, 4)}, {s(T[1])} offen sc1')
            p(f's_add_u32 {s(T[1])}, {s(T[1])}, 5120')
        p(f'''s_waitcnt vmcnt(0)
              {Lw}:
              s_barrier''')
        Lw = self.if_wave('eq', 0)
        p(f'''s_lshl_b32 {s(T[0])}, {s(sJ)}, 7
              s_lshl_b32 {s(T[1])}, {s(sRHO)}, 2
              s_add_u32 {s(T[0])}, {s(T[0])}, {s(T[1])}
              s_add_u32 {s(T[0])}, {s(T[0])}, {F0A}''')
        self.flag_store(T[0])
        p(f'''{Lw}:
              s_branch {Lr1}
              {Lm2}:''')
        Lw = self.if_wave('lt', 5)
        p(f'''v_lshlrev_b32 v13, 16, v12
              v_and_b32 v14, 0xffff0000, v12
              v_mul_f32 v15, {f32(-1.4426950408889634)}, v13
              v_mul_f32 v16, {f32(-1.4426950408889634)}, v14
              v_exp_f32 v15, v15
              v_exp_f32 v16, v16
              v_add_f32 v15, 1.0, v15
              v_add_f32 v16, 1.0, v16
              v_rcp_f32 v15, v15
              v_rcp_f32 v16, v16
              v_mul_f32 v13, v13, v15
              v_mul_f32 v14, v14, v16
              v_cvt_pk_bf16_f32 v13, v13, v14
              v_lshlrev_b32 v14, 2, v0
              v_add_u32 v14, {L_SILU}, v14
              ds_write_b32 v14, v13
              {Lw}:
              s_waitcnt lgkmcnt(0)
              s_barrier''')
        Lw = self.if_wave('lt', 4)
        p(f'''s_mul_i32 {s(T[6])}, {s(T[1])}, 320
              s_mul_i32 {s(T[7])}, {s(T[1])}, 5120
              s_lshl_b32 {s(T[2])}, {s(T[2])}, 8
              s_add_u32 {s(T[7])}, {s(T[7])}, {s(T[2])}
              s_add_u32 {s(T[7])}, {s(T[7])}, {MODP1}''')
        self.mod_job(L_PREP1, 5, T[6], T[7], 0)
        p(f'''s_waitcnt vmcnt(0)
              {Lw}:
              s_barrier''')
        Lw = self.if_wave('eq', 0)
        p(f'''s_sub_u32 {s(T[0])}, {s(sRHO)}, 22
              s_lshl_b32 {s(T[0])}, {s(T[0])}, 3
              s_add_u32 {s(T[0])}, {s(T[0])}, {s(sJ)}
              s_lshl_b32 {s(T[0])}, {s(T[0])}, 2
              s_add_u32 {s(T[0])}, {s(T[0])}, {F0M}''')
        self.flag_store(T[0])
        p(f'''{Lw}:
              {Lr1}:''')
        self.stamp('role1')
        p('s_waitcnt vmcnt(0)')
        self.stamp('xland')
        self.ln_unpack(96, 16)
        self.stage2_dma()
        self.ln_stats(16, 136)
        self.ln_haddr(152, 136)
        self.a_addr_swz(4, 136)
        p(f'''v_and_b32 v156, 31, v0
              v_lshlrev_b32 v156, 4, v156
              v_add_u32 v156, {L_C1}, v156''')
        self.stamp('stats1')

    def stage2_dma(self):
        p = self.p
        Lm, Ld = self.lab('s2m'), self.lab('s2d')
        p(f'''s_cmp_ge_u32 {s(sRHO)}, 22
              s_cbranch_scc1 {Lm}
              s_cmp_ge_u32 {s(sRHO)}, 20
              s_cbranch_scc1 {Ld}
              s_cmp_lt_u32 {s(sW)}, 5
              s_cbranch_scc1 {Ld}''')
        L6, L7 = self.lab('s26'), self.lab('s27')
        t = 136
        p(f'''s_mul_i32 {s(T[0])}, {s(sRHO)}, {32*1280}
              s_mul_i32 {s(T[1])}, {s(sJ)}, 160
              s_add_u32 {s(T[0])}, {s(T[0])}, {s(T[1])}
              s_cmp_eq_u32 {s(sW)}, 5
              s_cbranch_scc0 {L6}''')
        self.srd(RA, pWO, 640 * 1280)
        self.srd(RB, pWOUT, 864 * 1280)
        p(f's_add_u32 {s(T[2])}, {s(T[0])}, {20*32*1280}')
        for n in range(5):
            p(f'v_add_u32 {v(t)}, {64*n}, {v(vL)}')
            self.subtile_off(t+1, t, 10, 1280, t+2, t+3)
            self.dma(t+1, RA, T[0], L_PREP2 + n*1024)
            self.dma(t+1, RB, T[0], L_PREP2 + 5120 + n*1024)
            Lx = self.lab('wu2')
            p(f'''s_cmp_lt_u32 {s(sRHO)}, 7
                  s_cbranch_scc0 {Lx}''')
            self.dma(t+1, RB, T[2], L_PREP2 + 10240 + n*1024)
            p(f'{Lx}:')
        p(f'''s_branch {Ld}
              {L6}:''')
        self.srd(RA, pWIN, 640 * 3456)
        p(f'''s_mul_i32 {s(T[0])}, {s(sRHO)}, {32*3456}
              s_mul_i32 {s(T[1])}, {s(sJ)}, 224
              s_cmp_eq_u32 {s(sJ)}, 7
              s_cselect_b32 {s(T[1])}, 1536, {s(T[1])}
              s_add_u32 {s(T[0])}, {s(T[0])}, {s(T[1])}
              s_cmp_eq_u32 {s(sW)}, 6
              s_cselect_b32 {s(T[1])}, 1728, 0
              s_add_u32 {s(T[0])}, {s(T[0])}, {s(T[1])}
              s_cmp_eq_u32 {s(sW)}, 6
              s_mov_b32 {s(T[2])}, {L_PREP2 + 22528}
              s_cmov_b32 {s(T[2])}, {L_PREP2 + 15360}''')
        for n in range(7):
            p(f'v_add_u32 {v(t)}, {64*n}, {v(vL)}')
            self.subtile_off(t+1, t, 14, 3456, t+2, t+3)
            self.dma(t+1, RA, T[0], (T[2],))
            p(f's_add_u32 {s(T[2])}, {s(T[2])}, 1024')
        p(f'''s_branch {Ld}
              {Lm}:
              s_cmp_lt_u32 {s(sW)}, 4
              s_cbranch_scc1 {Ld}''')
        self.srd(RA, pWMOD, 640 * 7680)
        p(f'''s_sub_u32 {s(T[0])}, {s(sRHO)}, 22
              s_lshl_b32 {s(T[0])}, {s(T[0])}, 3
              s_add_u32 {s(T[0])}, {s(T[0])}, {s(sJ)}
              s_cmp_ge_u32 {s(T[0])}, 40
              s_cselect_b32 {s(T[1])}, {320*7680 - 40*128}, 0
              s_lshl_b32 {s(T[0])}, {s(T[0])}, 7
              s_add_u32 {s(T[0])}, {s(T[0])}, {s(T[1])}
              s_add_u32 {s(T[0])}, {s(T[0])}, 2560
              s_sub_u32 {s(T[1])}, {s(sW)}, 4
              s_mul_i32 {s(T[2])}, {s(T[1])}, {80*7680}
              s_add_u32 {s(T[0])}, {s(T[0])}, {s(T[2])}
              s_mul_i32 {s(T[2])}, {s(T[1])}, 10240
              s_add_u32 {s(T[2])}, {s(T[2])}, {L_PREP2}
              v_lshrrev_b32 {v(t)}, 3, {v(vL)}
              v_mul_u32_u24 {v(t)}, 7680, {v(t)}
              v_and_b32 {v(t+1)}, 7, {v(vL)}
              v_lshl_add_u32 {v(t)}, {v(t+1)}, 4, {v(t)}''')
        for n in range(10):
            self.dma(t, RA, T[0], (T[2],))
            p(f'''s_add_u32 {s(T[0])}, {s(T[0])}, {8*7680}
                  s_add_u32 {s(T[2])}, {s(T[2])}, 1024''')
        p(f'{Ld}:')

    def p1(self):
        p = self.p
        B1, B2 = 160, 96
        breg = lambda ks, b: (B1 + 8*ks + 4*b) if ks < 12 else (B2 + 8*(ks-12) + 4*b)
        Lw = self.if_wave('eq', 0)
        p(f'''v_lshlrev_b32 v8, 2, {v(vL)}
              v_add_u32 v8, {F0M}, v8
              v_subrev_u32 v9, 16, {v(vL)}
              v_min_u32 v9, 19, v9
              v_lshlrev_b32 v9, 2, v9
              s_lshl_b32 {s(T[0])}, {s(sJ)}, 7
              s_add_u32 {s(T[0])}, {s(T[0])}, {F0A}
              v_add_u32 v9, {s(T[0])}, v9
              v_add_u32 v10, 256, v8
              v_cmp_gt_u32 {s(T[8], 2)}, 16, {v(vL)}
              v_cndmask_b32 v9, v9, v10, {s(T[8], 2)}''')
        self.poll([8, 9], [10, 11])
        p(f'''{Lw}:
              s_barrier''')
        self.stamp('S0')
        vB0, vB1 = 8, 9
        p(f'''s_lshl_b32 {s(T[0])}, {s(sW)}, 11
              v_add_u32 {v(vB0)}, {s(T[0])}, {v(vL16)}
              s_cmp_eq_u32 {s(sW)}, 7
              s_cselect_b32 {s(T[0])}, 0x40000000, 1024
              v_add_u32 {v(vB1)}, {s(T[0])}, {v(vB0)}
              s_mul_i32 {s(T[1])}, {s(sJ)}, {20*15360}
              s_add_u32 {s(T[1])}, {s(T[1])}, {WQ}''')
        Lw5 = self.if_wave('lt', 5)
        p(f'''v_lshlrev_b32 v10, 4, v0
              s_mov_b32 {s(T[2])}, {MODP1}''')
        for k in range(4):
            p(f'buffer_load_dwordx4 {v(96 + 4*k, 4)}, v10, {s(RWS, 4)}, {s(T[2])} offen sc1')
            p(f's_add_u32 {s(T[2])}, {s(T[2])}, 5120')
        p(f'{Lw5}:')

        def bload(ks):
            p(f'buffer_load_dwordx4 {v(breg(ks, 0), 4)}, {v(vB0)}, {s(RWS, 4)}, {s(T[1])} offen sc1')
            p(f'buffer_load_dwordx4 {v(breg(ks, 1), 4)}, {v(vB1)}, {s(RWS, 4)}, {s(T[1])} offen sc1')
            p(f's_add_u32 {s(T[1])}, {s(T[1])}, 15360')
        for ks in range(12):
            bload(ks)
        Lw5 = self.if_wave('lt', 5)
        p('s_waitcnt vmcnt(24)')
        self.mod_consts(MODP1, 4, 5120, 96, 136, L_C1)
        p(f'''{Lw5}:
              s_waitcnt lgkmcnt(0)
              s_barrier''')
        self.stamp('consts')
        self.ln_cread(96, 156, 0)
        self.ln_apply(16, 96, 152, 136)
        self.stamp('apply')
        for ks in range(12, 20):
            bload(ks)
        p('''s_waitcnt lgkmcnt(0)
             s_barrier''')
        self.stamp('h1')
        acc = lambda b, mb: 16 + 16*b + 4*mb
        Ab = [48, 64]
        self.a_read_swz(Ab[0], 4, 0)
        for ks in range(20):
            if ks < 19:
                self.a_read_swz(Ab[(ks+1) & 1], 4, ks+1)
            p(f's_waitcnt vmcnt({38 - 2*ks}) lgkmcnt({4 if ks < 19 else 0})')
            for mb in range(4):
                for b in range(2):
                    p(f'v_mfma_f32_16x16x32_bf16 {v(acc(b, mb), 4)}, {v(breg(ks, b), 4)}, {v(Ab[ks & 1] + 4*mb, 4)}, {v(acc(b, mb), 4) if ks else 0}')
        self.stamp('gemm')
        ad = 80
        t = 96
        p(f'''v_and_b32 {v(t)}, 15, {v(vL)}
              v_lshrrev_b32 {v(t+1)}, 4, {v(vL)}''')
        for b in range(2):
            p(f'''s_lshl_b32 {s(T[0])}, {s(sW)}, 1
                  s_add_u32 {s(T[0])}, {s(T[0])}, {b}
                  s_mul_i32 {s(T[1])}, {s(T[0])}, 52
                  s_lshr_b32 {s(T[1])}, {s(T[1])}, 8
                  s_mul_i32 {s(T[2])}, {s(T[1])}, 5
                  s_sub_u32 {s(T[2])}, {s(T[0])}, {s(T[2])}
                  s_lshl_b32 {s(T[2])}, {s(T[2])}, 2
                  s_cmp_ge_u32 {s(T[1])}, 2
                  s_mov_b32 {s(T[3])}, 2816
                  s_cmov_b32 {s(T[3])}, 1280
                  s_mov_b32 {s(T[4])}, {L_OWN}
                  s_cmov_b32 {s(T[4])}, {L_QI}
                  s_mov_b32 {s(T[5])}, 11264
                  s_cmov_b32 {s(T[5])}, 5120
                  s_cmp_eq_u32 {s(T[1])}, 1
                  s_cselect_b64 {s(T[6], 2)}, -1, 0
                  v_add_u32 {v(t+2)}, {s(T[2])}, {v(t+1)}
                  v_mul_u32_u24 {v(t+3)}, 52, {v(t+2)}
                  v_lshrrev_b32 {v(t+3)}, 8, {v(t+3)}
                  v_mul_u32_u24 {v(t+4)}, 5, {v(t+3)}
                  v_sub_u32 {v(t+4)}, {v(t+2)}, {v(t+4)}
                  v_mul_u32_u24 {v(t+3)}, {s(T[3])}, {v(t+3)}
                  v_add_u32 {v(t+3)}, {s(T[4])}, {v(t+3)}
                  v_lshrrev_b32 {v(t+5)}, 1, {v(t+4)}
                  v_lshlrev_b32 {v(t+5)}, 9, {v(t+5)}
                  v_and_b32 {v(t+6)}, 1, {v(t+4)}
                  v_lshl_add_u32 {v(t+5)}, {v(t+6)}, 3, {v(t+5)}
                  v_lshlrev_b32 {v(t+6)}, 3, {v(t+4)}
                  v_add_u32 {v(t+6)}, 1280, {v(t+6)}
                  v_cndmask_b32 {v(t+5)}, {v(t+5)}, {v(t+6)}, {s(T[6], 2)}
                  v_add_u32 {v(t+3)}, {v(t+3)}, {v(t+5)}
                  v_cmp_eq_u32 {s(T[8], 2)}, 4, {v(t+4)}
                  v_mov_b32 {v(t+5)}, 16
                  v_mov_b32 {v(t+6)}, 8
                  v_cndmask_b32 {v(t+5)}, {v(t+5)}, {v(t+6)}, {s(T[8], 2)}
                  v_mov_b32 {v(t+6)}, 48
                  v_cndmask_b32 {v(t+5)}, {v(t+5)}, {v(t+6)}, {s(T[6], 2)}
                  v_mad_u32_u24 {v(ad + 4*b)}, {v(t)}, {v(t+5)}, {v(t+3)}
                  v_lshl_add_u32 {v(ad + 4*b + 1)}, {v(t+5)}, 4, {v(ad + 4*b)}
                  v_add_u32 {v(ad + 4*b + 2)}, {s(T[5])}, {v(ad + 4*b)}
                  v_add_u32 {v(ad + 4*b + 3)}, {s(T[5])}, {v(ad + 4*b + 1)}''')
        for u in range(20):
            assert (u * 52) >> 8 == u // 5
        Lw = self.if_wave('ge', 5)
        p(f'v_mov_b32 {v(t)}, {f32(SCALE_Q)}')
        for r in range(32):
            p(f'v_mul_f32 {v(16 + r)}, {v(t)}, {v(16 + r)}')
        p(f'{Lw}:')
        for b in range(2):
            if b:
                Lw = self.if_wave('lt', 7)
            for mb in range(4):
                a = acc(b, mb)
                p(f'''v_cvt_pk_bf16_f32 {v(a)}, {v(a)}, {v(a+1)}
                      v_cvt_pk_bf16_f32 {v(a+1)}, {v(a+2)}, {v(a+3)}
                      ds_write_b64 {v(ad + 4*b + mb)}, {v(a, 2)}''')
        p(f'''{Lw}:
              s_waitcnt lgkmcnt(0)
              s_barrier''')
        self.stamp('qkv')
        p(f'''s_lshl_b32 {s(T[0])}, {s(sI)}, 3
              s_add_u32 {s(T[0])}, {s(T[0])}, {s(sJ)}
              s_mul_i32 {s(T[0])}, {s(T[0])}, 22528
              s_add_u32 {s(T[0])}, {s(T[0])}, {KV}''')
        for a in range(3):
            p(f'''s_add_u32 {s(T[1])}, {s(sW)}, {8*a}
                  s_min_u32 {s(T[1])}, {s(T[1])}, 21
                  s_lshl_b32 {s(T[1])}, {s(T[1])}, 10
                  v_add_u32 {v(8 + a)}, {s(T[1])}, {v(vL16)}
                  v_add_u32 v11, {L_OWN}, {v(8 + a)}
                  ds_read_b128 {v(16 + 4*a, 4)}, v11''')
        for a in range(3):
            p(f'''s_waitcnt lgkmcnt({2 - a})
                  buffer_store_dwordx4 {v(16 + 4*a, 4)}, {v(8 + a)}, {s(RWS, 4)}, {s(T[0])} offen sc1''')
        p('''s_waitcnt vmcnt(0)
             s_barrier''')
        Lw = self.if_wave('eq', 0)
        p(f'''s_lshl_b32 {s(T[0])}, {s(sJ)}, 7
              s_lshl_b32 {s(T[1])}, {s(sI)}, 2
              s_add_u32 {s(T[0])}, {s(T[0])}, {s(T[1])}
              s_add_u32 {s(T[0])}, {s(T[0])}, {F1}''')
        self.flag_store(T[0])
        p(f'{Lw}:')
        self.stamp('kvpub')

    def stage2(self):
        p = self.p
        Lm, Ld = self.lab('j2m'), self.lab('j2d')
        p(f'''s_cmp_ge_u32 {s(sRHO)}, 22
              s_cbranch_scc1 {Lm}
              s_cmp_ge_u32 {s(sRHO)}, 20
              s_cbranch_scc1 {Ld}''')
        Lw7 = self.if_wave('lt', 7)
        self.tr_addr(8, 224, 10)
        self.tr_addr(9, 160, 10)
        p(f'''s_lshl_b32 {s(T[0])}, {s(sW)}, 5
              s_add_u32 {s(T[0])}, {s(T[0])}, {L_PREP2}
              v_add_u32 v8, {s(T[0])}, v8
              v_add_u32 v9, {s(T[0])}, v9
              s_lshl_b32 {s(T[0])}, {s(sW)}, 10
              s_mul_i32 {s(T[1])}, {s(sJ)}, 20
              s_add_u32 {s(T[1])}, {s(T[1])}, {s(sRHO)}
              s_mul_i32 {s(T[2])}, {s(T[1])}, 14336
              s_add_u32 {s(T[2])}, {s(T[2])}, {s(T[0])}
              s_add_u32 {s(T[2])}, {s(T[2])}, {WI}
              s_add_u32 {s(T[5])}, {s(T[2])}, 7168
              s_mul_i32 {s(T[3])}, {s(T[1])}, 5120
              s_add_u32 {s(T[3])}, {s(T[3])}, {s(T[0])}
              s_add_u32 {s(T[3])}, {s(T[3])}, {WO}
              s_mul_i32 {s(T[1])}, {s(sJ)}, 27
              s_add_u32 {s(T[1])}, {s(T[1])}, {s(sRHO)}
              s_mul_i32 {s(T[4])}, {s(T[1])}, 5120
              s_add_u32 {s(T[4])}, {s(T[4])}, {s(T[0])}
              s_add_u32 {s(T[4])}, {s(T[4])}, {WU}
              s_add_u32 {s(T[6])}, {s(T[4])}, {20*5120}''')
        self.tr_frag(16, 8, 15360, 224)
        self.tr_frag(20, 8, 22528, 224)
        self.tr_frag(24, 9, 0, 160)
        self.tr_frag(28, 9, 5120, 160)
        self.tr_frag(32, 9, 10240, 160)
        p(f'''s_waitcnt lgkmcnt(6)
              buffer_store_dwordx4 v[16:19], {v(vL16)}, {s(RWS, 4)}, {s(T[2])} offen sc1
              buffer_store_dwordx4 v[20:23], {v(vL16)}, {s(RWS, 4)}, {s(T[5])} offen sc1
              s_waitcnt lgkmcnt(0)''')
        Lw5 = self.if_wave('lt', 5)
        p(f'''buffer_store_dwordx4 v[24:27], {v(vL16)}, {s(RWS, 4)}, {s(T[3])} offen sc1
              buffer_store_dwordx4 v[28:31], {v(vL16)}, {s(RWS, 4)}, {s(T[4])} offen sc1
              s_cmp_lt_u32 {s(sRHO)}, 7
              s_cbranch_scc0 {Lw5}
              buffer_store_dwordx4 v[32:35], {v(vL16)}, {s(RWS, 4)}, {s(T[6])} offen sc1
              {Lw5}:
              s_waitcnt vmcnt(0)
              {Lw7}:
              s_barrier''')
        Lw = self.if_wave('eq', 1)
        p(f'''s_lshl_b32 {s(T[0])}, {s(sJ)}, 7
              s_lshl_b32 {s(T[1])}, {s(sRHO)}, 2
              s_add_u32 {s(T[0])}, {s(T[0])}, {s(T[1])}
              s_add_u32 {s(T[0])}, {s(T[0])}, {FP2}''')
        self.flag_store(T[0])
        p(f'''{Lw}:
              s_branch {Ld}
              {Lm}:''')
        Lw = self.if_wave('ge', 4)
        p(f'''s_sub_u32 {s(T[2])}, {s(sRHO)}, 22
              s_lshl_b32 {s(T[2])}, {s(T[2])}, 3
              s_add_u32 {s(T[2])}, {s(T[2])}, {s(sJ)}
              s_cmp_ge_u32 {s(T[2])}, 40
              s_cselect_b32 {s(T[6])}, 640, 0
              s_lshl_b32 {s(T[7])}, {s(T[2])}, 8
              s_add_u32 {s(T[7])}, {s(T[7])}, {MODP2}''')
        self.mod_job(L_PREP2, 10, T[6], T[7], 4)
        p(f'''s_waitcnt vmcnt(0)
              {Lw}:
              s_barrier''')
        Lw = self.if_wave('eq', 1)
        p(f'''s_sub_u32 {s(T[0])}, {s(sRHO)}, 22
              s_lshl_b32 {s(T[0])}, {s(T[0])}, 3
              s_add_u32 {s(T[0])}, {s(T[0])}, {s(sJ)}
              s_lshl_b32 {s(T[0])}, {s(T[0])}, 2
              s_add_u32 {s(T[0])}, {s(T[0])}, {FM2}''')
        self.flag_store(T[0])
        p(f'''{Lw}:
              {Ld}:''')
        self.stamp('stage2')

    def attn(self):
        p = self.p
        Q0, Q1 = 8, 12
        KB = [16, 24, 32]
        SB = [40, 56, 72]
        CN, OA = 88, 104
        VB = [120, 128]
        PX, MK = 136, 144
        aK0, aK1, aV = 152, 154, 156
        vM, t = 158, 160
        FA, FD = 168, 170
        sNINV = T[0]
        p(f"""s_mul_i32 {s(T[1])}, {s(sNH)}, 11264
              s_mul_i32 {s(T[2])}, {s(sKQ)}, 2816
              s_add_u32 {s(T[1])}, {s(T[1])}, {s(T[2])}
              v_add_u32 {v(aK0)}, {s(T[1])}, {v(vL16)}
              v_and_b32 {v(t)}, 31, {v(vL)}
              v_lshlrev_b32 {v(t+1)}, 3, {v(t)}
              v_add_u32 {v(t+1)}, 1024, {v(t+1)}
              v_add_u32 {v(aK1)}, {s(T[1])}, {v(t+1)}
              v_lshrrev_b32 {v(t+2)}, 5, {v(vL)}
              v_bfe_u32 {v(t+3)}, {v(vL)}, 2, 2
              v_lshl_add_u32 {v(t+3)}, {v(t+2)}, 2, {v(t+3)}
              v_mul_u32_u24 {v(t+3)}, 48, {v(t+3)}
              v_bfe_u32 {v(t+4)}, {v(vL)}, 4, 1
              v_lshl_add_u32 {v(t+3)}, {v(t+4)}, 5, {v(t+3)}
              v_and_b32 {v(t+4)}, 3, {v(vL)}
              v_lshl_add_u32 {v(t+3)}, {v(t+4)}, 3, {v(t+3)}
              v_add_u32 {v(t+3)}, 1280, {v(t+3)}
              v_add_u32 {v(aV)}, {s(T[1])}, {v(t+3)}
              v_add_u32 {v(aK0+1)}, {5*11264}, {v(aK0)}
              v_add_u32 {v(aK1+1)}, {5*11264}, {v(aK1)}
              v_add_u32 {v(aV+1)}, {5*11264}, {v(aV)}
              s_mul_i32 {s(T[1])}, {s(sNH)}, 5120
              s_mul_i32 {s(T[2])}, {s(sKQ)}, 1280
              s_add_u32 {s(T[1])}, {s(T[1])}, {s(T[2])}
              s_add_u32 {s(T[1])}, {s(T[1])}, {L_QI}
              v_add_u32 {v(t+3)}, {s(T[1])}, {v(vL16)}
              v_add_u32 {v(t+1)}, {s(T[1])}, {v(t+1)}
              ds_read_b128 {v(Q0, 4)}, {v(t+3)}
              ds_read_b64 {v(Q1, 2)}, {v(t+1)}
              v_mov_b32 {v(Q1+2)}, 0
              v_mov_b32 {v(Q1+3)}, 0""")
        for b in KB:
            p(f'v_mov_b32 {v(b+6)}, 0\nv_mov_b32 {v(b+7)}, 0')
        p(f'v_lshlrev_b32 {v(t+2)}, 2, {v(t+2)}')
        for r in range(16):
            p(f"""v_add_u32 {v(t+4)}, {8*(r >> 2) + (r & 3)}, {v(t+2)}
                  v_cmp_le_u32 {s(sMASK + 2*r, 2)}, {v(t+4)}, {v(t)}""")
        p(f"""v_mov_b32 {v(t+4)}, 0
              v_mov_b32 {v(t+5)}, 0xffff
              v_mov_b32 {v(t+6)}, 0xffff0000""")
        for a in range(8):
            p(f"""v_cndmask_b32 {v(MK+a)}, {v(t+4)}, {v(t+5)}, {s(sMASK + 4*a, 2)}
                  v_cndmask_b32 {v(t+7)}, {v(t+4)}, {v(t+6)}, {s(sMASK + 4*a + 2, 2)}
                  v_or_b32 {v(MK+a)}, {v(MK+a)}, {v(t+7)}""")
        p(f"""v_cmp_gt_u32 {s(T[8], 2)}, 32, {v(vL)}
              s_waitcnt lgkmcnt(0)
              v_cndmask_b32 {v(Q1)}, {v(t+4)}, {v(Q1)}, {s(T[8], 2)}
              v_cndmask_b32 {v(Q1+1)}, {v(t+4)}, {v(Q1+1)}, {s(T[8], 2)}
              v_lshlrev_b32 {v(FA)}, 2, {v(vL)}
              v_add_u32 {v(FA)}, {FM2}, {v(FA)}
              v_subrev_u32 {v(FA+1)}, 16, {v(vL)}
              v_min_u32 {v(FA+1)}, 19, {v(FA+1)}
              v_lshlrev_b32 {v(FA+1)}, 2, {v(FA+1)}
              s_lshl_b32 {s(T[1])}, {s(sJ)}, 7
              s_add_u32 {s(T[1])}, {s(T[1])}, {FP2}
              v_add_u32 {v(FA+1)}, {s(T[1])}, {v(FA+1)}
              v_add_u32 {v(t+4)}, 256, {v(FA)}
              v_cmp_gt_u32 {s(T[8], 2)}, 16, {v(vL)}
              v_cndmask_b32 {v(FA+1)}, {v(FA+1)}, {v(t+4)}, {s(T[8], 2)}""")
        Lw = self.if_wave('eq', 0)
        p(f"""v_and_b32 {v(t)}, 3, {v(vL)}
              v_add_u32 {v(t)}, {s(sI)}, {v(t)}
              v_subrev_u32 {v(t)}, 4, {v(t)}
              v_max_i32 {v(t)}, 0, {v(t)}
              v_lshlrev_b32 {v(t)}, 2, {v(t)}
              s_lshl_b32 {s(T[1])}, {s(sJ)}, 7
              s_add_u32 {s(T[1])}, {s(T[1])}, {F1}
              v_add_u32 {v(t)}, {s(T[1])}, {v(t)}""")
        self.poll([t], [t+1])
        p(f"""{Lw}:
              s_barrier""")
        self.stamp('S1')
        p(f"""s_lshr_b32 {s(T[1])}, {s(sW)}, 1
              s_add_u32 {s(T[2])}, {s(sI)}, {s(T[1])}
              s_sub_i32 {s(T[2])}, {s(T[2])}, 4
              s_max_i32 {s(T[2])}, {s(T[2])}, 0
              s_lshl_b32 {s(T[2])}, {s(T[2])}, 3
              s_add_u32 {s(T[2])}, {s(T[2])}, {s(sJ)}
              s_mul_i32 {s(T[2])}, {s(T[2])}, 22528
              s_and_b32 {s(T[3])}, {s(sW)}, 1
              s_mul_i32 {s(T[3])}, {s(T[3])}, 11264
              s_add_u32 {s(T[2])}, {s(T[2])}, {s(T[3])}
              s_add_u32 {s(T[2])}, {s(T[2])}, {KV}
              s_mul_i32 {s(T[3])}, {s(sW)}, 11264""")
        for a in range(11):
            self.dma(vL16, RWS, T[2], (T[3],) if a % 4 == 0 else None, imm=(a % 4)*1024, sc1=True)
            if a % 4 == 3:
                p(f"""s_add_u32 {s(T[2])}, {s(T[2])}, 4096
                      s_add_u32 {s(T[3])}, {s(T[3])}, 4096""")
        p(f"""s_lshl_b32 {s(T[1])}, {s(sI)}, 1
              s_add_u32 {s(T[1])}, {s(T[1])}, {s(sNH)}
              s_sub_i32 {s(sNINV)}, 8, {s(T[1])}
              s_waitcnt vmcnt(0)
              s_barrier""")
        self.stamp('halo')

        order = [0, 8, 1, 2, 3, 4, 5, 6, 7]

        def kread(x):
            n = order[x]
            b = KB[x % 3]
            hi = 1 if n >= 5 else 0
            off = (n - 5*hi) * 11264
            p(f'ds_read_b128 {v(b, 4)}, {v(aK0+hi)} offset:{off}')
            p(f'ds_read_b64 {v(b+4, 2)}, {v(aK1+hi)} offset:{off}')

        def qk(x, c):
            b, S = KB[x % 3], SB[x % 3]
            p(f'v_mfma_f32_32x32x16_bf16 {v(S, 16)}, {v(b, 4)}, {v(Q0, 4)}, {c}')
            p(f'v_mfma_f32_32x32x16_bf16 {v(S, 16)}, {v(b+4, 4)}, {v(Q1, 4)}, {v(S, 16)}')

        def invalidate(x):
            n = order[x]
            if n == 8:
                return
            L = self.lab('inv')
            p(f"""s_cmp_gt_i32 {s(sNINV)}, {n}
                  s_cbranch_scc0 {L}""")
            for r in range(16):
                p(f'v_mov_b32 {v(SB[x % 3] + r)}, {f32(-1e30)}')
            p(f'{L}:')

        def merge():
            for r in range(16):
                p(f'v_cndmask_b32 {v(SB[1] + r)}, {v(SB[0] + r)}, {v(SB[1] + r)}, {s(sMASK + 2*r, 2)}')

        def vread(x):
            n = order[x]
            b = VB[x & 1]
            hi = 1 if n >= 5 else 0
            off = (n - 5*hi) * 11264
            for tt in range(2):
                p(f'ds_read_b64_tr_b16 {v(b + 4*tt, 2)}, {v(aV+hi)} offset:{off + tt*768}')
                p(f'ds_read_b64_tr_b16 {v(b + 4*tt + 2, 2)}, {v(aV+hi)} offset:{off + tt*768 + 384}')

        kread(0)
        kread(1)
        for x in range(10):
            if x + 2 < 9:
                kread(x + 2)
            if x < 9:
                p(f's_waitcnt lgkmcnt({2 * min(2, 8 - x)})')
                qk(x, 0)
            y = x - 1
            if y < 0:
                continue
            invalidate(y)
            if y == 0:
                continue
            if y == 1:
                merge()
            S = SB[y % 3]
            for r in range(0, 16, 2):
                if y == 1 and r == 0:
                    p(f'v_max_f32 {v(vM)}, {v(S)}, {v(S+1)}')
                else:
                    p(f'v_max3_f32 {v(vM)}, {v(vM)}, {v(S+r)}, {v(S+r+1)}')
        kread(0)
        kread(1)
        for a in range(2):
            p(f'buffer_load_dword {v(FD+a)}, {v(FA+a)}, {s(RWS, 4)}, 0 offen sc1')
        p(f"""v_mov_b32 {v(t)}, {v(vM)}
              v_permlane32_swap_b32 {v(t)}, {v(vM)}
              v_max_f32 {v(vM)}, {v(vM)}, {v(t)}""")
        for r in range(16):
            p(f'v_sub_f32 {v(CN + r)}, 0, {v(vM)}')
        first_pv = [True]

        def pv(vb, P):
            for tt in range(2):
                c = '0' if first_pv[0] else v(OA, 16)
                first_pv[0] = False
                p(f'v_mfma_f32_32x32x16_bf16 {v(OA, 16)}, {v(vb + 4*tt, 4)}, {v(P + 4*tt, 4)}, {c}')

        def softexp(S):
            for r in range(16):
                p(f'v_exp_f32 {v(S+r)}, {v(S+r)}')
                if r & 1 and r >= 3:
                    a = (r - 3) >> 1
                    p(f'v_cvt_pk_bf16_f32 {v(S+a)}, {v(S+2*a)}, {v(S+2*a+1)}')
            p(f'v_cvt_pk_bf16_f32 {v(S+7)}, {v(S+14)}, {v(S+15)}')

        for x in range(10):
            if x + 2 < 9:
                kread(x + 2)
            if x < 9:
                p('s_waitcnt lgkmcnt(%d)' % self._lg_after_k(x))
                qk(x, v(CN, 16))
            y = x - 1
            if x == 0:
                vread(0)
                continue
            if x == 1:
                vread(1)
                invalidate(0)
                continue
            invalidate(y)
            S = SB[y % 3]
            if y == 1:
                merge()
                softexp(S)
                for a in range(8):
                    p(f'v_and_b32 {v(PX+a)}, {v(S+a)}, {v(MK+a)}')
                for a in range(8):
                    p(f'v_xor_b32 {v(S+a)}, {v(S+a)}, {v(PX+a)}')
                p('s_waitcnt lgkmcnt(2)')
                pv(VB[0], S)
                pv(VB[1], PX)
                vread(2)
                vread(3)
            else:
                softexp(S)
                p('s_waitcnt lgkmcnt(%d)' % self._lg_before_pv(x))
                pv(VB[y & 1], S)
                if y + 2 < 9:
                    vread(y + 2)
        self.stamp('pv')
        self.poll([FA, FA+1], [FD, FD+1], first_issued=True)
        p(f"""v_mov_b32 {v(t)}, {v(OA+8)}
              v_mov_b32 {v(t+1)}, {v(OA+8)}
              v_permlane32_swap_b32 {v(t)}, {v(t+1)}
              v_rcp_f32 {v(t+1)}, {v(t+1)}
              v_lshrrev_b32 {v(t+2)}, 5, {v(vL)}
              s_mul_i32 {s(T[1])}, {s(sKQ)}, 5
              v_add_u32 {v(t+2)}, {s(T[1])}, {v(t+2)}
              v_and_b32 {v(t+3)}, 31, {v(vL)}
              s_lshl_b32 {s(T[2])}, {s(sNH)}, 5
              v_add_u32 {v(t+3)}, {s(T[2])}, {v(t+3)}
              v_lshlrev_b32 {v(t+3)}, 4, {v(t+3)}
              v_add_u32 {v(t+3)}, {L_OST}, {v(t+3)}""")
        for r in range(12):
            p(f'v_mul_f32 {v(OA+r)}, {v(OA+r)}, {v(t+1)}')
        p(f"""v_lshrrev_b32 {v(t+4)}, 1, {v(t+2)}
              v_and_b32 {v(t+5)}, 1, {v(t+2)}
              v_lshlrev_b32 {v(t+5)}, 3, {v(t+5)}
              v_lshl_add_u32 {v(t+4)}, {v(t+4)}, 10, {v(t+5)}
              v_add_u32 {v(t+4)}, {v(t+4)}, {v(t+3)}""")
        for a in range(6):
            p(f'v_cvt_pk_bf16_f32 {v(OA+a)}, {v(OA+2*a)}, {v(OA+2*a+1)}')
        p(f"""ds_write_b64 {v(t+4)}, {v(OA, 2)}
              ds_write_b64 {v(t+4)}, {v(OA+2, 2)} offset:1024
              s_mov_b32 exec_hi, 0
              ds_write_b64 {v(t+4)}, {v(OA+4, 2)} offset:2048
              s_mov_b32 exec_hi, -1
              s_waitcnt lgkmcnt(0)
              s_barrier""")
        p(f"""s_mul_i32 {s(T[1])}, {s(sI)}, 81920
              s_mul_i32 {s(T[2])}, {s(sJ)}, 10240
              s_add_u32 {s(T[1])}, {s(T[1])}, {s(T[2])}
              s_add_u32 {s(T[1])}, {s(T[1])}, {OO}""")
        self.publish10(L_OST, T[1], 8, F2)
        self.stamp('opub')
        self.wo_bload()

    def _lg_after_k(self, x):
        seq = self._pass2_seq()
        return self._count_after(seq, ('K', x), ('W', x))

    def _lg_before_pv(self, x):
        seq = self._pass2_seq()
        return self._count_after(seq, ('V', x - 1), ('P', x))

    def _pass2_seq(self):
        seq = [('K', 0, 2), ('K', 1, 2)]
        for x in range(10):
            if x + 2 < 9:
                seq.append(('K', x + 2, 2))
            seq.append(('W', x, 0))
            y = x - 1
            if x == 0:
                seq.append(('V', 0, 4))
            elif x == 1:
                seq.append(('V', 1, 4))
            elif y == 1:
                seq.append(('P', x, 0))
                seq.append(('V', 2, 4))
                seq.append(('V', 3, 4))
            else:
                seq.append(('P', x, 0))
                if y + 2 < 9:
                    seq.append(('V', y + 2, 4))
        return seq

    def _count_after(self, seq, a, b):
        ia = [i for i, e in enumerate(seq) if e[:2] == a][0]
        ib = [i for i, e in enumerate(seq) if e[:2] == b][0]
        return min(15, sum(e[2] for e in seq[ia + 1:ib]))

    def publish10(self, lds, sdst, t, flagbase):
        p = self.p
        for a in range(2):
            p(f"""s_add_u32 {s(T[2])}, {s(sW)}, {8*a}
                  s_min_u32 {s(T[2])}, {s(T[2])}, 9
                  s_lshl_b32 {s(T[2])}, {s(T[2])}, 10
                  v_add_u32 {v(t+a)}, {s(T[2])}, {v(vL16)}
                  v_add_u32 {v(t+2)}, {lds}, {v(t+a)}
                  ds_read_b128 {v(t + 4 + 4*a, 4)}, {v(t+2)}""")
        for a in range(2):
            Lw = self.if_wave('lt', 2) if a else None
            p(f"""s_waitcnt lgkmcnt({1 - a})
                  buffer_store_dwordx4 {v(t + 4 + 4*a, 4)}, {v(t+a)}, {s(RWS, 4)}, {s(sdst)} offen sc1""")
            if Lw:
                p(f'{Lw}:')
        p("""s_waitcnt vmcnt(0) lgkmcnt(0)
             s_barrier""")
        Lw = self.if_wave('eq', 0)
        p(f"""s_lshl_b32 {s(T[1])}, {s(sI)}, 7
              s_lshl_b32 {s(T[2])}, {s(sJ)}, 2
              s_add_u32 {s(T[1])}, {s(T[1])}, {s(T[2])}
              s_add_u32 {s(T[1])}, {s(T[1])}, {flagbase}""")
        self.flag_store(T[1])
        p(f'{Lw}:')

    GB_WO = 176
    GB_WU = 156

    def small_bload(self, base, nks_total, nks, breg):
        p = self.p
        t = 8
        p(f"""s_mul_i32 {s(T[1])}, {s(sJ)}, {nks_total}
              s_mul_i32 {s(T[2])}, {s(sKQ)}, {nks}
              s_add_u32 {s(T[1])}, {s(T[1])}, {s(T[2])}
              s_mul_i32 {s(T[1])}, {s(T[1])}, 5120
              s_mul_i32 {s(T[2])}, {s(sNH)}, 3072
              s_add_u32 {s(T[1])}, {s(T[1])}, {s(T[2])}
              s_add_u32 {s(T[1])}, {s(T[1])}, {base}
              s_lshl_b32 {s(T[2])}, {s(sNH)}, 30
              v_add_u32 {v(t)}, {s(T[2])}, {v(vL16)}""")
        for ks in range(nks):
            if ks == 6:
                p(f"""s_cmp_eq_u32 {s(sKQ)}, 3
                      s_cselect_b32 {s(T[2])}, 0x40000000, 0
                      v_or_b32 {v(t)}, {s(T[2])}, {v(t)}
                      v_or_b32 {v(t+3)}, {s(T[2])}, {v(vL16)}""")
            for nb in range(3):
                a = (vL16 if ks < 6 else t + 3) if nb < 2 else t
                p(f'buffer_load_dwordx4 {v(breg + 12*ks + 4*nb, 4)}, {v(a)}, {s(RWS, 4)}, {s(T[1])} offen offset:{nb*1024} sc1')
            p(f's_add_u32 {s(T[1])}, {s(T[1])}, 5120')

    def wo_bload(self):
        self.small_bload(WO, 20, 5, self.GB_WO)

    def small_gemm(self, nks, breg, lds_a, lds_red, red_alias):
        p = self.p
        ACC, AB, aA, t = 48, [16, 32], 96, 100
        acc = lambda a, nb: ACC + 12*a + 4*nb
        L2 = None

        def aread(ks):
            for a in range(4):
                p(f'ds_read_b128 {v(AB[ks & 1] + 4*a, 4)}, {v(aA + a)} offset:{ks*4096}')
        aread(0)
        p(f's_cmp_eq_u32 {s(sNH)}, 0')
        for ks in range(nks):
            if ks + 1 < nks:
                aread(ks + 1)
            p(f's_waitcnt lgkmcnt({4 if ks + 1 < nks else 0})')
            for nb in range(2):
                for a in range(4):
                    p(f'v_mfma_f32_16x16x32_bf16 {v(acc(a, nb), 4)}, {v(breg + 12*ks + 4*nb, 4)}, {v(AB[ks & 1] + 4*a, 4)}, {v(acc(a, nb), 4) if ks else 0}')
            L = self.lab('n3')
            p(f's_cbranch_scc0 {L}')
            for a in range(4):
                p(f'v_mfma_f32_16x16x32_bf16 {v(acc(a, 2), 4)}, {v(breg + 12*ks + 8, 4)}, {v(AB[ks & 1] + 4*a, 4)}, {v(acc(a, 2), 4) if ks else 0}')
            p(f'{L}:')
        for a in range(1, 4):
            p(f"""s_add_u32 {s(T[1])}, {s(sKQ)}, {a}
                  s_and_b32 {s(T[1])}, {s(T[1])}, 3
                  s_mul_i32 {s(T[1])}, {s(T[1])}, 15360
                  s_mul_i32 {s(T[2])}, {s(sNH)}, 3072
                  s_add_u32 {s(T[1])}, {s(T[1])}, {s(T[2])}
                  s_add_u32 {s(T[1])}, {s(T[1])}, {lds_red + (a - 1)*5120}
                  v_add_u32 {v(t + a)}, {s(T[1])}, {v(vL16)}""")
        p(f"""s_mul_i32 {s(T[1])}, {s(sKQ)}, 15360
              s_add_u32 {s(T[1])}, {s(T[1])}, {s(T[2])}
              s_add_u32 {s(T[1])}, {s(T[1])}, {lds_red}
              v_add_u32 {v(t)}, {s(T[1])}, {v(vL16)}""")
        if red_alias:
            p('s_barrier')
        for nb in range(3):
            if nb == 2:
                L = self.lab('r3')
                p(f"""s_cmp_eq_u32 {s(sNH)}, 0
                      s_cbranch_scc0 {L}""")
            for a in range(1, 4):
                p(f'ds_write_b128 {v(t + a)}, {v(acc(a, nb), 4)} offset:{nb*1024}')
        p(f"""{L}:
              s_waitcnt lgkmcnt(0)
              s_barrier""")
        RD = 104
        for nb in range(3):
            for a in range(3):
                p(f'ds_read_b128 {v(RD + 12*nb + 4*a, 4)}, {v(t)} offset:{a*5120 + nb*1024}')
        for nb in range(3):
            p(f's_waitcnt lgkmcnt({3*(2 - nb)})')
            for e in range(4):
                p(f"""v_add_f32 {v(RD + 12*nb + e)}, {v(RD + 12*nb + e)}, {v(RD + 12*nb + 4 + e)}
                      v_add_f32 {v(acc(0, nb) + e)}, {v(acc(0, nb) + e)}, {v(RD + 12*nb + 8 + e)}""")
            for e in range(4):
                p(f'v_add_f32 {v(acc(0, nb) + e)}, {v(acc(0, nb) + e)}, {v(RD + 12*nb + e)}')
        return ACC

    def small_aaddr(self, lds_a, nks):
        p = self.p
        p(f"""v_and_b32 v100, 15, {v(vL)}
              v_lshlrev_b32 v100, 4, v100
              v_lshrrev_b32 v101, 4, {v(vL)}
              v_lshl_add_u32 v100, v101, 10, v100
              s_mul_i32 {s(T[1])}, {s(sKQ)}, {nks*4096}""")
        for a in range(4):
            p(f"""s_add_u32 {s(T[2])}, {s(sKQ)}, {a}
                  s_and_b32 {s(T[2])}, {s(T[2])}, 3
                  s_lshl_b32 {s(T[2])}, {s(T[2])}, 8
                  s_add_u32 {s(T[2])}, {s(T[2])}, {s(T[1])}
                  s_add_u32 {s(T[2])}, {s(T[2])}, {lds_a}
                  v_add_u32 {v(96 + a)}, {s(T[2])}, v100""")

    def gate_load(self, G, modoff, t):
        p = self.p
        p(f"""v_lshrrev_b32 {v(t)}, 4, {v(vL)}
              v_lshlrev_b32 {v(t)}, 4, {v(t)}
              s_mul_i32 {s(T[1])}, {s(sJ)}, 320
              s_mul_i32 {s(T[2])}, {s(sNH)}, 192
              s_add_u32 {s(T[1])}, {s(T[1])}, {s(T[2])}
              s_add_u32 {s(T[1])}, {s(T[1])}, {MODP2 + modoff*4}
              s_add_u32 {s(T[2])}, {s(T[1])}, 10240""")
        for nb in range(3):
            p(f'buffer_load_dwordx4 {v(G + 4*nb, 4)}, {v(t)}, {s(RWS, 4)}, {s(T[1])} offen offset:{nb*64} sc1')
            p(f'buffer_load_dwordx4 {v(G + 12 + 4*nb, 4)}, {v(t)}, {s(RWS, 4)}, {s(T[2])} offen offset:{nb*64} sc1')

    def gate_fin(self, G, t):
        p = self.p
        for e in range(12):
            p(f'v_add_f32 {v(G+e)}, {v(G+e)}, {v(G+12+e)}')
        for e in range(0, 12, 2):
            p(f"""v_cvt_pk_bf16_f32 {v(t)}, {v(G+e)}, {v(G+e+1)}
                  v_lshlrev_b32 {v(G+e)}, 16, {v(t)}
                  v_and_b32 {v(G+e+1)}, 0xffff0000, {v(t)}""")

    def stage_rows(self, src, lds, t):
        p = self.p
        p(f"""v_and_b32 {v(t)}, 15, {v(vL)}
              s_lshl_b32 {s(T[1])}, {s(sKQ)}, 4
              v_add_u32 {v(t)}, {s(T[1])}, {v(t)}
              v_mul_u32_u24 {v(t)}, 160, {v(t)}
              v_lshrrev_b32 {v(t+1)}, 4, {v(vL)}
              v_lshl_add_u32 {v(t)}, {v(t+1)}, 3, {v(t)}
              s_mul_i32 {s(T[1])}, {s(sNH)}, 96
              s_add_u32 {s(T[1])}, {s(T[1])}, {lds}
              v_add_u32 {v(t)}, {s(T[1])}, {v(t)}
              ds_write_b64 {v(t)}, {v(src, 2)}
              ds_write_b64 {v(t)}, {v(src+2, 2)} offset:32""")
        L = self.lab('sr')
        p(f"""s_cmp_eq_u32 {s(sNH)}, 0
              s_cbranch_scc0 {L}
              ds_write_b64 {v(t)}, {v(src+4, 2)} offset:64
              {L}:
              s_waitcnt lgkmcnt(0)
              s_barrier""")

    def group_wait_dma(self, flagbase, wsbase, blockbytes, npieces, lds):
        raise NotImplementedError

    def wo(self):
        p = self.p
        G, XR = 140, 164
        self.srd(RA, pX, 2048 * 1280)
        p(f"""v_and_b32 v8, 15, {v(vL)}
              v_mul_u32_u24 v8, 1280, v8
              v_lshrrev_b32 v9, 4, {v(vL)}
              v_lshl_add_u32 v8, v9, 3, v8
              s_lshl_b32 {s(T[1])}, {s(sI)}, 2
              s_add_u32 {s(T[1])}, {s(T[1])}, {s(sKQ)}
              s_mul_i32 {s(T[1])}, {s(T[1])}, {16*1280}
              s_mul_i32 {s(T[2])}, {s(sJ)}, 160
              s_add_u32 {s(T[1])}, {s(T[1])}, {s(T[2])}
              s_mul_i32 {s(T[2])}, {s(sNH)}, 96
              s_add_u32 {s(T[1])}, {s(T[1])}, {s(T[2])}""")
        for nb in range(3):
            p(f'buffer_load_dwordx2 {v(XR + 2*nb, 2)}, v8, {s(RA, 4)}, {s(T[1])} offen offset:{nb*32}')
        self.gate_load(G, 0, 9)
        Lw5 = self.if_wave('lt', 5)
        p(f"""v_lshlrev_b32 v10, 4, v0
              s_mov_b32 {s(T[2])}, {MODP2 + 640*4}
              buffer_load_dwordx4 v[16:19], v10, {s(RWS, 4)}, {s(T[2])} offen sc1
              s_add_u32 {s(T[2])}, {s(T[2])}, 10240
              buffer_load_dwordx4 v[20:23], v10, {s(RWS, 4)}, {s(T[2])} offen sc1
              s_waitcnt vmcnt(0)""")
        self.mod_consts(None, 2, None, 16, 24, L_C2)
        p(f'{Lw5}:')
        self.small_aaddr(L_OI, 5)
        p(f"""s_lshl_b32 {s(T[1])}, {s(sI)}, 7
              s_lshl_b32 {s(T[2])}, {s(sW)}, 2
              s_add_u32 {s(T[1])}, {s(T[1])}, {s(T[2])}
              s_add_u32 {s(T[1])}, {s(T[1])}, {F2}
              v_mov_b32 v8, {s(T[1])}""")
        self.poll([8], [9])
        self.stamp('S2')
        p(f"""s_mul_i32 {s(T[3])}, {s(sW)}, 10240
              s_mul_i32 {s(T[2])}, {s(sI)}, 81920
              s_add_u32 {s(T[2])}, {s(T[2])}, {s(T[3])}
              s_add_u32 {s(T[2])}, {s(T[2])}, {OO}""")
        for a in range(10):
            self.dma(vL16, RWS, T[2], (T[3],) if a % 4 == 0 else None, imm=(a % 4)*1024, sc1=True)
            if a % 4 == 3:
                p(f"""s_add_u32 {s(T[2])}, {s(T[2])}, 4096
                      s_add_u32 {s(T[3])}, {s(T[3])}, 4096""")
        self.gate_fin(G, 9)
        p("""s_waitcnt vmcnt(0) lgkmcnt(0)
             s_barrier""")
        self.stamp('oland')
        A = self.small_gemm(5, self.GB_WO, L_OI, L_RED, False)
        self.stamp('wogemm')
        for nb in range(3):
            p(f"""v_lshlrev_b32 v8, 16, {v(XR + 2*nb)}
                  v_and_b32 v9, 0xffff0000, {v(XR + 2*nb)}
                  v_lshlrev_b32 v10, 16, {v(XR + 2*nb + 1)}
                  v_and_b32 v11, 0xffff0000, {v(XR + 2*nb + 1)}""")
            for e in range(4):
                p(f'v_fmac_f32 {v(8+e)}, {v(G + 4*nb + e)}, {v(A + 4*nb + e)}')
            p(f"""v_cvt_pk_bf16_f32 {v(vX1K + 2*nb)}, v8, v9
                  v_cvt_pk_bf16_f32 {v(vX1K + 2*nb + 1)}, v10, v11""")
        self.stage_rows(vX1K, L_X1S, 8)
        p(f"""s_mul_i32 {s(T[1])}, {s(sI)}, 81920
              s_mul_i32 {s(T[2])}, {s(sJ)}, 10240
              s_add_u32 {s(T[1])}, {s(T[1])}, {s(T[2])}
              s_add_u32 {s(T[1])}, {s(T[1])}, {X1}""")
        self.publish10(L_X1S, T[1], 8, F3)
        self.stamp('x1pub')

    def gelu(self, a, n, t):
        p = self.p
        k1 = -2.0 * 1.4426950408889634 * 0.7978845608028654
        k2 = k1 * 0.044715
        c = t + n
        p(f'v_mov_b32 {v(c)}, {f32(k1)}')
        for e in range(n):
            p(f'v_mul_f32 {v(t+e)}, {v(a+e)}, {v(a+e)}')
        for e in range(n):
            p(f'v_fmamk_f32 {v(t+e)}, {v(t+e)}, {f32(k2)}, {v(c)}')
        for e in range(n):
            p(f'v_mul_f32 {v(t+e)}, {v(t+e)}, {v(a+e)}')
        for e in range(n):
            p(f'v_exp_f32 {v(t+e)}, {v(t+e)}')
        for e in range(n):
            p(f'v_add_f32 {v(t+e)}, 1.0, {v(t+e)}')
        for e in range(n):
            p(f'v_rcp_f32 {v(t+e)}, {v(t+e)}')
        for e in range(n):
            p(f'v_mul_f32 {v(a+e)}, {v(a+e)}, {v(t+e)}')

    def spa_addr(self, dst):
        self.p(f"""v_lshrrev_b32 {v(dst)}, 3, {v(vL)}
                   v_and_b32 {v(dst+1)}, 6, {v(dst)}
                   v_and_b32 {v(dst+2)}, 7, {v(vL)}
                   v_xor_b32 {v(dst+1)}, {v(dst+1)}, {v(dst+2)}
                   v_lshlrev_b32 {v(dst)}, 12, {v(dst)}
                   v_lshl_add_u32 {v(dst)}, {v(dst+1)}, 4, {v(dst)}""")

    def spa_dma(self, it, vaddr):
        p = self.p
        lds = L_SPB if it % 2 == 0 else L_SPA
        L = self.lab('spa')
        p(f"""s_lshl_b32 {s(T[1])}, {s(sI)}, 18
              s_add_u32 {s(T[1])}, {s(T[1])}, {it*1024}
              s_mov_b32 {s(T[2])}, {lds}
              s_mov_b32 {s(T[3])}, 0
              {L}:""")
        for rg in range(8):
            p(f's_add_u32 {s(T[4])}, {s(T[1])}, {rg*32768}')
            self.dma(vaddr, RA, T[4], (T[2],))
            p(f's_add_u32 {s(T[2])}, {s(T[2])}, 1024')
        p(f"""s_waitcnt vmcnt(40)
              s_add_u32 {s(T[1])}, {s(T[1])}, 128
              s_add_u32 {s(T[3])}, {s(T[3])}, 1
              s_cmp_lt_u32 {s(T[3])}, 8
              s_cbranch_scc1 {L}""")

    def win(self):
        p = self.p
        B1, B2 = 160, 96
        b1 = lambda ks: B1 + 4*ks
        b2 = lambda ks: (B2 + 4*ks) if ks < 16 else (B1 + 4*(ks - 16))
        sNB = T[5]
        sB = T[6]
        vB = 8
        p(f"""s_cmp_ge_u32 {s(sJ)}, 6
              s_cselect_b32 {s(sNB)}, 6, 7
              s_cmp_lt_u32 {s(sW)}, {s(sNB)}
              s_cselect_b32 {s(T[1])}, 0, 0x40000000
              s_lshl_b32 {s(T[2])}, {s(sW)}, 10
              s_add_u32 {s(T[1])}, {s(T[1])}, {s(T[2])}
              v_add_u32 {v(vB)}, {s(T[1])}, {v(vL16)}
              s_mul_i32 {s(sB)}, {s(sJ)}, {20*14336}
              s_add_u32 {s(sB)}, {s(sB)}, {WI}
              s_mov_b32 {s(T[7])}, {s(sB)}""")
        Lw = self.if_wave('lt', 7)
        for ks in range(20):
            p(f"""buffer_load_dwordx4 {v(b1(ks), 4)}, {v(vB)}, {s(RWS, 4)}, {s(T[7])} offen sc1
                  s_add_u32 {s(T[7])}, {s(T[7])}, 14336""")
        p(f'{Lw}:')
        xa = 140
        p(f"""v_lshrrev_b32 v10, 5, v0
              v_mul_u32_u24 v10, 640, v10
              v_and_b32 v11, 31, v0""")
        for hc in range(160):
            assert (hc * 205) >> 12 == hc // 20
        for m in range(5):
            p(f"""v_add_u32 v12, {32*m}, v11
                  v_mul_u32_u24 v13, 205, v12
                  v_lshrrev_b32 v13, 12, v13
                  v_mul_u32_u24 v14, {10240 - 160}, v13
                  v_lshl_add_u32 v14, v12, 3, v14
                  v_add_u32 {v(xa + m)}, v14, v10""")
        self.ln_haddr(152, 136)
        self.a_addr_swz(4, 136)
        p(f"""v_lshlrev_b32 v156, 4, v11
              v_add_u32 v156, {L_C2}, v156""")
        Lw = self.if_wave('eq', 7)
        p(f"""v_and_b32 v10, 7, {v(vL)}
              v_lshlrev_b32 v10, 2, v10
              s_lshl_b32 {s(T[1])}, {s(sI)}, 7
              s_add_u32 {s(T[1])}, {s(T[1])}, {F3}
              v_add_u32 v10, {s(T[1])}, v10""")
        self.poll([10], [11])
        p(f"""{Lw}:
              s_barrier""")
        self.stamp('S3')
        p(f"""s_mul_i32 {s(T[1])}, {s(sI)}, 81920
              s_add_u32 {s(T[1])}, {s(T[1])}, {X1}""")
        for a in range(4):
            for m in range(5):
                p(f'buffer_load_dwordx2 {v(96 + 10*a + 2*m, 2)}, {v(xa + m)}, {s(RWS, 4)}, {s(T[1])} offen offset:{a*160} sc1')
        p('s_waitcnt vmcnt(0)')
        self.stamp('x1land')
        self.ln_unpack(96, 16)
        self.ln_cread(96, 156, 0)
        self.ln_stats(16, 136)
        self.ln_apply(16, 96, 152, 136)
        p("""s_waitcnt lgkmcnt(0)
             s_barrier""")
        self.stamp('h2')
        Lsvc, Ljoin = self.lab('svc'), self.lab('join')
        p(f"""s_cmp_eq_u32 {s(sW)}, 7
              s_cbranch_scc1 {Lsvc}""")
        AB = [48, 64, 80]
        p(f's_add_u32 {s(T[7])}, {s(sB)}, 7168')

        def gpass(acc, breg, loads):
            self.a_read_swz(AB[0], 4, 0)
            self.a_read_swz(AB[1], 4, 1)
            for ks in range(20):
                if ks + 2 < 20:
                    self.a_read_swz(AB[(ks + 2) % 3], 4, ks + 2)
                w = f'lgkmcnt({4 * min(2, 19 - ks)})'
                if not loads:
                    w = f'vmcnt({19 - ks}) ' + w
                p(f's_waitcnt {w}')
                for mb in range(4):
                    p(f'v_mfma_f32_16x16x32_bf16 {v(acc + 4*mb, 4)}, {v(breg(ks), 4)}, {v(AB[ks % 3] + 4*mb, 4)}, {v(acc + 4*mb, 4) if ks else 0}')
                if loads:
                    p(f"""buffer_load_dwordx4 {v(b2(ks), 4)}, {v(vB)}, {s(RWS, 4)}, {s(T[7])} offen sc1
                          s_add_u32 {s(T[7])}, {s(T[7])}, 14336""")
        Z, Z1 = 16, 32
        gpass(Z, b1, True)
        self.gelu(Z, 16, 48)
        S1, S2 = 48, 52
        for mb in range(4):
            z = Z + 4*mb
            p(f"""v_add_f32 {v(S1+mb)}, {v(z)}, {v(z+1)}
                  v_mul_f32 {v(S2+mb)}, {v(z)}, {v(z)}
                  v_add_f32 {v(68+mb)}, {v(z+2)}, {v(z+3)}
                  v_fmac_f32 {v(S2+mb)}, {v(z+1)}, {v(z+1)}
                  v_add_f32 {v(S1+mb)}, {v(S1+mb)}, {v(68+mb)}
                  v_fmac_f32 {v(S2+mb)}, {v(z+2)}, {v(z+2)}
                  v_fmac_f32 {v(S2+mb)}, {v(z+3)}, {v(z+3)}""")
        for S in (S1, S2):
            p(f"""v_permlane16_swap_b32 {v(S)}, {v(S+1)}
                  v_permlane16_swap_b32 {v(S+2)}, {v(S+3)}""")
        for S in (S1, S2):
            p(f"""v_add_f32 {v(S)}, {v(S)}, {v(S+1)}
                  v_add_f32 {v(S+2)}, {v(S+2)}, {v(S+3)}""")
        for S in (S1, S2):
            p(f'v_permlane32_swap_b32 {v(S)}, {v(S+2)}')
        p(f"""v_add_f32 v56, {v(S1)}, {v(S1+2)}
              v_add_f32 v57, {v(S2)}, {v(S2+2)}
              s_lshl_b32 {s(T[1])}, {s(sW)}, 9
              s_add_u32 {s(T[1])}, {s(T[1])}, {L_STP}
              v_lshlrev_b32 v58, 3, {v(vL)}
              v_add_u32 v58, {s(T[1])}, v58
              ds_write_b64 v58, v[56:57]
              s_waitcnt lgkmcnt(0)
              s_barrier""")
        self.stamp('z2raw')
        gpass(Z1, b2, False)
        p('s_barrier')
        self.stamp('z1raw')
        p(f"""v_and_b32 v56, 15, {v(vL)}
              v_lshlrev_b32 v57, 3, v56
              v_add_u32 v57, {L_STF}, v57""")
        for mb in range(4):
            p(f'ds_read_b64 {v(48 + 2*mb, 2)}, v57 offset:{mb*128}')
        p(f"""v_lshrrev_b32 v58, 4, {v(vL)}
              v_lshlrev_b32 v58, 3, v58
              v_lshl_add_u32 v58, v56, 5, v58
              s_lshl_b32 {s(T[1])}, {s(sW)}, 11
              v_add_u32 v58, {s(T[1])}, v58""")
        self.tr_addr(59, 32, 60)
        p(f"""v_add_u32 v59, {s(T[1])}, v59
              s_mul_i32 {s(T[2])}, {s(sJ)}, 64
              s_lshl_b32 {s(T[3])}, {s(sI)}, 1
              s_add_u32 {s(T[2])}, {s(T[2])}, {s(T[3])}
              s_mul_i32 {s(T[2])}, {s(T[2])}, 7168
              s_add_u32 {s(T[2])}, {s(T[2])}, {Z2}
              s_add_u32 {s(T[3])}, {s(T[2])}, 7168""")
        for mb in range(4):
            z = Z + 4*mb
            p(f's_waitcnt lgkmcnt({3 - mb + mb})' if False else f's_waitcnt lgkmcnt(3)')
            for e in range(4):
                p(f'v_fma_f32 {v(z+e)}, {v(z+e)}, {v(48 + 2*mb)}, -{v(49 + 2*mb)}')
            p(f"""v_cvt_pk_bf16_f32 {v(z)}, {v(z)}, {v(z+1)}
                  v_cvt_pk_bf16_f32 {v(z+1)}, {v(z+2)}, {v(z+3)}
                  ds_write_b64 v58, {v(z, 2)} offset:{L_TR + mb*512}""")
        p('s_waitcnt lgkmcnt(0)')
        self.tr_frag(64, 59, L_TR, 32)
        self.tr_frag(68, 59, L_TR + 1024, 32)
        p(f"""s_waitcnt lgkmcnt(2)
              buffer_store_dwordx4 v[64:67], {v(vB)}, {s(RWS, 4)}, {s(T[2])} offen sc1
              s_waitcnt lgkmcnt(0)
              buffer_store_dwordx4 v[68:71], {v(vB)}, {s(RWS, 4)}, {s(T[3])} offen sc1
              s_waitcnt vmcnt(0)
              s_barrier""")
        self.stamp('z2pub')
        self.gelu(Z1, 16, 48)
        for mb in range(4):
            z = Z1 + 4*mb
            p(f"""v_cvt_pk_bf16_f32 {v(vZ1K + 2*mb)}, {v(z)}, {v(z+1)}
                  v_cvt_pk_bf16_f32 {v(vZ1K + 2*mb + 1)}, {v(z+2)}, {v(z+3)}""")
        p(f"""s_branch {Ljoin}
              {Lsvc}:""")
        self.srd(RA, pWSP, 2048 * 4096)
        self.spa_addr(12)
        self.spa_dma(0, 12)
        p(f"""v_lshlrev_b32 v16, 3, {v(vL)}
              v_add_u32 v17, {L_STP}, v16
              v_and_b32 v18, 7, {v(vL)}
              v_lshlrev_b32 v18, 2, v18
              s_lshl_b32 {s(T[1])}, {s(sI)}, 7
              s_add_u32 {s(T[1])}, {s(T[1])}, {F4A}
              v_add_u32 v18, {s(T[1])}, v18
              s_lshl_b32 {s(T[2])}, {s(sJ)}, 2
              s_add_u32 {s(T[4])}, {s(T[1])}, {s(T[2])}
              s_lshl_b32 {s(T[1])}, {s(sI)}, 12
              s_add_u32 {s(T[1])}, {s(T[1])}, {ST}
              s_lshl_b32 {s(T[2])}, {s(sJ)}, 9
              s_add_u32 {s(T[2])}, {s(T[2])}, {s(T[1])}
              s_barrier""")
        self.stamp('z2raw')
        for w in range(7):
            p(f'ds_read_b64 {v(20 + 2*w, 2)}, v17 offset:{w*512}')
        p('s_waitcnt lgkmcnt(0)')
        for w in range(1, 7):
            p(f"""v_add_f32 v20, v20, {v(20 + 2*w)}
                  v_add_f32 v21, v21, {v(21 + 2*w)}""")
        p(f"""buffer_store_dwordx2 v[20:21], v16, {s(RWS, 4)}, {s(T[2])} offen sc1
              s_waitcnt vmcnt(0)""")
        self.flag_store(T[4])
        self.poll([18], [19])
        for w in range(8):
            p(f'buffer_load_dwordx2 {v(20 + 2*w, 2)}, v16, {s(RWS, 4)}, {s(T[1])} offen offset:{w*512} sc1')
        p('s_waitcnt vmcnt(0)')
        for w in range(1, 8):
            p(f"""v_add_f32 v20, v20, {v(20 + 2*w)}
                  v_add_f32 v21, v21, {v(21 + 2*w)}""")
        inv = f32(1.0 / 864)
        p(f"""v_mul_f32 v20, {inv}, v20
              v_mul_f32 v21, {inv}, v21
              v_fma_f32 v21, -v20, v20, v21
              v_max_f32 v21, 0, v21
              v_add_f32 v21, {f32(1e-5)}, v21
              v_rsq_f32 v22, v21
              v_mul_f32 v23, v20, v22
              v_add_u32 v17, {L_STF}, v16
              ds_write_b64 v17, v[22:23]
              s_waitcnt lgkmcnt(0)
              s_barrier""")
        self.stamp('z1raw')
        p(f"""s_lshl_b32 {s(T[1])}, {s(sJ)}, 7
              s_lshl_b32 {s(T[2])}, {s(sI)}, 2
              s_add_u32 {s(T[4])}, {s(T[1])}, {s(T[2])}
              s_add_u32 {s(T[4])}, {s(T[4])}, {F4}
              s_barrier""")
        self.flag_store(T[4])
        self.stamp('z2pub')
        self.spa_dma(1, 12)
        p(f'{Ljoin}:')

    def wsp(self):
        p = self.p
        sNB, vB = T[5], 8
        ACC, AB, BR = 16, [44, 60, 76], 92
        aA, BS = 4, 32
        Lsvc, Ljoin = self.lab('svc'), self.lab('join')
        p(f"""s_cmp_eq_u32 {s(sW)}, 7
              s_cbranch_scc1 {Lsvc}""")
        self.srd(RB, pBSP, 4096)
        p(f"""v_and_b32 v36, 15, {v(vL)}
              v_lshlrev_b32 v37, 1, v36
              s_lshl_b32 {s(T[1])}, {s(sI)}, 7""")
        for mb in range(4):
            p(f'buffer_load_ushort {v(BS + mb)}, v37, {s(RB, 4)}, {s(T[1])} offen offset:{mb*32}')
        p(f"""v_lshrrev_b32 v37, 4, {v(vL)}
              v_and_b32 v38, 6, v36
              v_lshrrev_b32 v39, 3, v36
              v_lshlrev_b32 v39, 10, v39
              v_and_b32 v40, 7, v36
              v_lshl_add_u32 v39, v40, 7, v39
              v_add_u32 v39, {L_SPB}, v39""")
        for e in range(2):
            p(f"""v_add_u32 v40, {4*e}, v37
                  v_xor_b32 v40, v40, v38
                  v_lshl_add_u32 {v(aA + e)}, v40, 4, v39""")
        p(f"""s_mul_i32 {s(T[7])}, {s(sJ)}, {64*7168}
              s_add_u32 {s(T[7])}, {s(T[7])}, {Z2}
              s_mov_b32 {s(T[6])}, 0
              s_waitcnt vmcnt(0)""")
        for mb in range(4):
            p(f'v_lshlrev_b32 {v(BS + mb)}, 16, {v(BS + mb)}')
        for r in range(16):
            p(f'v_mov_b32 {v(ACC + r)}, 0')
        p('s_barrier')
        self.stamp('S4')

        def bload(k):
            p(f"""buffer_load_dwordx4 {v(BR + 4*k, 4)}, {v(vB)}, {s(RWS, 4)}, {s(T[7])} offen sc1
                  s_add_u32 {s(T[7])}, {s(T[7])}, 7168""")

        def aread(k):
            for mb in range(4):
                p(f'ds_read_b128 {v(AB[k % 3] + 4*mb, 4)}, {v(aA + (k & 1))} offset:{(k >> 1)*8192 + mb*2048}')
        for k in range(16):
            bload(k)
        Lit = self.lab('it')
        p(f'{Lit}:')
        p(f"""s_cmp_eq_u32 {s(T[6])}, 3
              s_cselect_b32 {s(T[1])}, 0x40000000, 0
              v_or_b32 {v(vB)}, {s(T[1])}, {v(vB)}""")
        aread(0)
        aread(1)
        for k in range(16):
            if k + 2 < 16:
                aread(k + 2)
            p(f's_waitcnt vmcnt(15) lgkmcnt({4 * min(2, 15 - k)})')
            for mb in range(4):
                p(f'v_mfma_f32_16x16x32_bf16 {v(ACC + 4*mb, 4)}, {v(BR + 4*k, 4)}, {v(AB[k % 3] + 4*mb, 4)}, {v(ACC + 4*mb, 4)}')
            bload(k)
        Lout = self.lab('out')
        p(f"""v_xor_b32 {v(aA)}, 0x10000, {v(aA)}
              v_xor_b32 {v(aA + 1)}, 0x10000, {v(aA + 1)}
              s_add_u32 {s(T[6])}, {s(T[6])}, 1
              s_cmp_eq_u32 {s(T[6])}, 4
              s_cbranch_scc1 {Lout}
              s_barrier
              s_branch {Lit}
              {Lout}:""")
        self.stamp('spgemm')
        assert L_SPA ^ 0x10000 == L_SPB
        Y = 44
        for mb in range(4):
            a = ACC + 4*mb
            p(f"""v_lshlrev_b32 v36, 16, {v(vZ1K + 2*mb)}
                  v_and_b32 v37, 0xffff0000, {v(vZ1K + 2*mb)}
                  v_lshlrev_b32 v38, 16, {v(vZ1K + 2*mb + 1)}
                  v_and_b32 v39, 0xffff0000, {v(vZ1K + 2*mb + 1)}""")
            for e in range(4):
                p(f'v_add_f32 {v(a+e)}, {v(a+e)}, {v(BS + mb)}')
            for e in range(4):
                p(f'v_mul_f32 {v(a+e)}, {v(a+e)}, {v(36+e)}')
            d = Y + 4*(mb >> 1) + 2*(mb & 1)
            p(f"""v_cvt_pk_bf16_f32 {v(d)}, {v(a)}, {v(a+1)}
                  v_cvt_pk_bf16_f32 {v(d+1)}, {v(a+2)}, {v(a+3)}""")
        p(f"""v_and_b32 v36, 31, {v(vL)}
              v_lshlrev_b32 v36, 4, v36
              v_lshrrev_b32 v37, 5, {v(vL)}
              v_lshl_add_u32 v36, v37, 10, v36
              s_cmp_lt_u32 {s(sW)}, {s(sNB)}
              s_cselect_b32 {s(T[1])}, 0, 0x40000000
              v_add_u32 v36, {s(T[1])}, v36
              s_mul_i32 {s(T[1])}, {s(sJ)}, 14
              s_cmp_eq_u32 {s(sJ)}, 7
              s_cselect_b32 {s(T[1])}, 96, {s(T[1])}
              s_lshl_b32 {s(T[2])}, {s(sW)}, 1
              s_add_u32 {s(T[1])}, {s(T[1])}, {s(T[2])}
              s_lshl_b32 {s(T[1])}, {s(T[1])}, 10
              s_mul_i32 {s(T[2])}, {s(sI)}, 110592
              s_add_u32 {s(T[1])}, {s(T[1])}, {s(T[2])}
              s_add_u32 {s(T[1])}, {s(T[1])}, {YY}""")
        for h in range(2):
            d = Y + 4*h
            p(f"""v_permlane16_swap_b32 {v(d)}, {v(d+2)}
                  v_permlane16_swap_b32 {v(d+1)}, {v(d+3)}""")
        for h in range(2):
            p(f'buffer_store_dwordx4 {v(Y + 4*h, 4)}, v36, {s(RWS, 4)}, {s(T[1])} offen offset:{h*512} sc1')
        p(f"""s_waitcnt vmcnt(0)
              s_barrier
              s_branch {Ljoin}
              {Lsvc}:""")
        p(f"""v_and_b32 v16, 31, {v(vL)}
              v_lshlrev_b32 v16, 2, v16
              s_lshl_b32 {s(T[1])}, {s(sJ)}, 7
              s_add_u32 {s(T[1])}, {s(T[1])}, {F4}
              v_add_u32 v16, {s(T[1])}, v16""")
        self.poll([16], [17])
        p('s_barrier')
        self.stamp('S4')
        p('s_barrier')
        self.spa_dma(2, 12)
        p("""s_waitcnt vmcnt(0)
             s_barrier""")
        self.spa_dma(3, 12)
        p(f"""s_waitcnt vmcnt(0)
              s_barrier
              s_lshl_b32 {s(T[1])}, {s(sI)}, 7
              s_lshl_b32 {s(T[2])}, {s(sJ)}, 2
              s_add_u32 {s(T[4])}, {s(T[1])}, {s(T[2])}
              s_add_u32 {s(T[4])}, {s(T[4])}, {F5}""")
        self.stamp('spgemm')
        p('s_barrier')
        self.flag_store(T[4])
        p(f'{Ljoin}:')
        self.stamp('ypub')

    def wout(self):
        p = self.p
        self.small_bload(WU, 27, 7, self.GB_WU)
        self.gate_load(104, 1920, 9)
        self.small_aaddr(L_YI, 7)
        p(f"""s_lshl_b32 {s(T[1])}, {s(sI)}, 7
              s_lshl_b32 {s(T[2])}, {s(sW)}, 2
              s_add_u32 {s(T[1])}, {s(T[1])}, {s(T[2])}
              s_add_u32 {s(T[1])}, {s(T[1])}, {F5}
              v_mov_b32 v8, {s(T[1])}""")
        self.poll([8], [9])
        self.stamp('S5')
        p(f"""s_mul_i32 {s(T[3])}, {s(sW)}, 14336
              s_cmp_eq_u32 {s(sW)}, 7
              s_cselect_b32 {s(T[3])}, {96*1024}, {s(T[3])}
              s_mul_i32 {s(T[2])}, {s(sI)}, 110592
              s_add_u32 {s(T[2])}, {s(T[2])}, {s(T[3])}
              s_add_u32 {s(T[2])}, {s(T[2])}, {YY}""")
        Lw = None
        for a in range(14):
            if a == 12:
                Lw = self.if_wave('lt', 6)
            self.dma(vL16, RWS, T[2], (T[3],) if a % 4 == 0 else None, imm=(a % 4)*1024, sc1=True)
            if a % 4 == 3:
                p(f"""s_add_u32 {s(T[2])}, {s(T[2])}, 4096
                      s_add_u32 {s(T[3])}, {s(T[3])}, 4096""")
        p(f'{Lw}:')
        self.gate_fin(104, 9)
        for e in range(12):
            p(f'v_mov_b32 {v(140 + e)}, {v(104 + e)}')
        G = 140
        p(f"""v_mov_b32 v8, 0
              v_mov_b32 v9, 0
              v_lshlrev_b32 v10, 3, v0
              v_add_u32 v10, {L_YI + 108*1024}, v10
              ds_write_b64 v10, v[8:9]
              s_waitcnt vmcnt(0) lgkmcnt(0)
              s_barrier""")
        self.stamp('yland')
        A = self.small_gemm(7, self.GB_WU, L_YI, L_RED2, True)
        self.stamp('wugemm')
        for nb in range(3):
            p(f"""v_lshlrev_b32 v8, 16, {v(vX1K + 2*nb)}
                  v_and_b32 v9, 0xffff0000, {v(vX1K + 2*nb)}
                  v_lshlrev_b32 v10, 16, {v(vX1K + 2*nb + 1)}
                  v_and_b32 v11, 0xffff0000, {v(vX1K + 2*nb + 1)}""")
            for e in range(4):
                p(f'v_fmac_f32 {v(8+e)}, {v(G + 4*nb + e)}, {v(A + 4*nb + e)}')
            p(f"""v_cvt_pk_bf16_f32 {v(16 + 2*nb)}, v8, v9
                  v_cvt_pk_bf16_f32 {v(17 + 2*nb)}, v10, v11""")
        self.stage_rows(16, L_OUTS, 8)
        self.srd(RA, pOUT, 2048 * 1280)
        p(f"""s_mul_i32 {s(T[1])}, {s(sI)}, 81920
              s_mul_i32 {s(T[2])}, {s(sJ)}, 160
              s_add_u32 {s(T[1])}, {s(T[1])}, {s(T[2])}""")
        for idx in range(640):
            assert (idx * 6554) >> 16 == idx // 10
        for a in range(2):
            Lw = self.if_wave('lt', 2) if a else None
            p(f"""v_add_u32 v8, {512*a}, v0
                  v_lshlrev_b32 v9, 4, v8
                  v_add_u32 v9, {L_OUTS}, v9
                  ds_read_b128 v[16:19], v9
                  v_mul_u32_u24 v10, 6554, v8
                  v_lshrrev_b32 v10, 16, v10
                  v_mul_u32_u24 v10, {1280 - 160}, v10
                  v_lshl_add_u32 v10, v8, 4, v10
                  s_waitcnt lgkmcnt(0)
                  buffer_store_dwordx4 v[16:19], v10, {s(RA, 4)}, {s(T[1])} offen""")
            if Lw:
                p(f'{Lw}:')

    def finish(self):
        p = self.p
        self.stamp('@c1')
        self.stamp('@r1', real=True)
        Lw = self.lab('fin')
        p(f'''s_cmp_eq_u32 s2, 0
              s_cbranch_scc0 {Lw}
              s_cmp_eq_u32 {s(sW)}, 0
              s_cbranch_scc0 {Lw}
              s_add_u32 {s(T[0])}, {s(sE)}, 1
              v_mov_b32 v3, {s(T[0])}
              s_mov_b64 exec, 1
              buffer_store_dword v3, off, {s(RWS, 4)}, 0 sc1
              s_mov_b64 exec, -1
              {Lw}:
              s_waitcnt vmcnt(0)
              L_end:
              s_endpgm''')

    def build(self):
        phases = ['prologue', 'p1', 'stage2', 'attn', 'wo', 'win', 'wsp', 'wout']
        for ph in phases:
            if not hasattr(self, ph):
                break
            getattr(self, ph)()
            if self.stop == ph:
                break
        self.finish()
        nops = self.p.fix_hazards_fast()
        errs = []
        for w in range(8):
            for rho, j in ((0, 0), (10, 7), (20, 0), (25, 7)):
                for e in self.p.check_waits({sW: w, sRHO: rho, sKQ: w & 3, sNH: w >> 2, sJ: j}):
                    if e not in errs:
                        errs.append(e)
        for e in errs:
            print('WAIT', e, file=sys.stderr)
        mv, ms = self.p.max_regs()
        assert mv < 256 and ms < 102, (mv, ms)
        body = self.p.text()
        hdr = open('cdna_kernels/' + NAME + '.s.ref').read().split('; Override launch')[0]
        out = hdr + f'''; One persistent launch: 256 workgroups (one per CU) hand tiles to each other through d_ws.
; Generated by a script of my own (phase emitters, wait-state fixer).
; @launch grid=(256,1,1) block=(512,1,1) lds={LDS_BYTES}
.amdgcn_target "amdgcn-amd-amdhsa--gfx950"
.text
.globl {NAME}_kernel
.p2align 8
.type {NAME}_kernel,@function
{NAME}_kernel:
.set CODE_BYTES, L_end - {NAME}_kernel - 256
{body}.section .rodata,"a"
.p2align 6
.amdhsa_kernel {NAME}_kernel
  .amdhsa_next_free_vgpr 256
  .amdhsa_next_free_sgpr 102
  .amdhsa_accum_offset 256
  .amdhsa_group_segment_fixed_size 0
  .amdhsa_kernarg_size 104
  .amdhsa_user_sgpr_count 2
  .amdhsa_user_sgpr_kernarg_segment_ptr 1
  .amdhsa_system_sgpr_workgroup_id_x 1
.end_amdhsa_kernel
'''
        print(f'generated: {len(self.p.ins)} lines, {nops} nop states, max v{mv} s{ms}, {len(errs)} wait errors', file=sys.stderr)
        return out


if __name__ == '__main__':
    import argparse
    ap = argparse.ArgumentParser()
    ap.add_argument('-o', default='k.s')
    ap.add_argument('--stop')
    ap.add_argument('--stamps', action='store_true')
    ap.add_argument('--only')
    a = ap.parse_args()
    g = Gen(a.stop, a.stamps, a.only.split(',') if a.only else None)
    open(a.o, 'w').write(g.build())
    if a.stamps:
        open(a.o + '.stamps', 'w').write('\n'.join(g.stampnames))
```
